```python
import torch

def _softmax(x, axis=-1):
    return torch.softmax(x, dim=axis)
def _gelu(x):
    return torch.nn.functional.gelu(x, approximate="tanh")
def _silu(x):
    return torch.nn.functional.silu(x)
def _sigmoid(x):
    return torch.sigmoid(x)
def _layernorm(x, axis=-1, eps=1e-5):
    m = x.mean(dim=axis, keepdim=True)
    v = x.var(dim=axis, keepdim=True, unbiased=False)
    return (x - m) / torch.sqrt(v + eps)
def _scatter_add(tgt, idx, src, axis=0):
    return tgt.clone().index_add_(axis, idx, src)
def _segment_sum(src, seg, n):
    out = torch.zeros((n,) + src.shape[1:], dtype=src.dtype)
    return out.index_add_(0, seg, src)
def _pad(x, pw):
    flat = tuple(v for pair in reversed(pw) for v in pair)
    return torch.nn.functional.pad(x, flat)

kernel_name = 'standalone__cheap_equivariant_egnn__graph'

def setup_inputs():

    _w = (lambda a: (lambda t: t.to(torch.bfloat16) if t.is_floating_point() else t)(torch.as_tensor(a)))
    N, deg, D, De = 12500, 32, 128, max(4, 1)
    E = N * deg
    return {
        "h": _w((lambda *s: torch.randn(*s, dtype=torch.bfloat16) * 0.1)(N, D)),
        "pos": _w((lambda *s: torch.randn(*s, dtype=torch.bfloat16) * 0.8)(N, 3)),
        "e_attr": _w((lambda *s: torch.randn(*s, dtype=torch.bfloat16) * 0.8)(E, De)),
        "src": _w((lambda lo, hi, *s: torch.randint(lo, hi, s))(0, N, E).to(torch.int64)),
        "dst": _w((lambda lo, hi, *s: torch.randint(lo, hi, s))(0, N, E).to(torch.int64)),
        "w_e": _w(0.1 * (lambda *s: torch.randn(*s, dtype=torch.bfloat16) * 0.8)(2 * D + 1 + De, D)),
        "w_x": _w(0.1 * (lambda *s: torch.randn(*s, dtype=torch.bfloat16) * 0.1)(D, 1)),
        "w_h": _w(0.1 * (lambda *s: torch.randn(*s, dtype=torch.bfloat16) * 0.1)(2 * D, D)),
    }

def reference(h, pos, e_attr, src, dst, w_e, w_x, w_h):
    N, D = h.shape[0], h.shape[1]
    diff = pos[dst] - pos[src]
    dist2 = torch.sum(diff * diff, axis=-1, keepdims=True)
    e_in = torch.concatenate([h[dst], h[src], dist2, e_attr], axis=-1)
    m_ij = _silu(e_in @ w_e)
    coord_scale = m_ij @ w_x
    pos_new = pos + _segment_sum(diff * coord_scale, dst, N)
    m_i = _segment_sum(m_ij, dst, N)
    h_new = h + _silu(torch.concatenate([h, m_i], axis=-1) @ w_h)
    return h_new, pos_new
```

```python
import re

TRANS = ("v_exp_f32", "v_log_f32", "v_rcp_f32", "v_rsq_f32", "v_sqrt_f32", "v_sin_f32", "v_cos_f32")


def _regs(tok):
    tok = tok.strip()
    m = re.fullmatch(r"([vsa])(\d+)", tok)
    if m:
        return m.group(1), [int(m.group(2))]
    m = re.fullmatch(r"([vsa])\[(\d+):(\d+)\]", tok)
    if m:
        return m.group(1), list(range(int(m.group(2)), int(m.group(3)) + 1))
    if tok in ("vcc", "exec", "m0", "scc"):
        return tok, [0]
    return None, []


class Ins:
    __slots__ = ("text", "op", "wr", "rd", "kind", "mfma_c", "mfma_d", "passes", "is_label", "nop", "dpp", "lanesel",
                 "store_data", "ldsdma")

    def __init__(self, text):
        self.text = text
        self.is_label = False
        self.nop = 0
        self.wr = set()
        self.rd = set()
        self.kind = "other"
        self.mfma_c = set()
        self.mfma_d = set()
        self.passes = 0
        self.dpp = False
        self.lanesel = set()
        self.store_data = set()
        self.ldsdma = False
        t = text.split(";")[0].strip()
        if not t or t.startswith("."):
            self.op = ""
            self.kind = "none"
            return
        if t.endswith(":"):
            self.op = ""
            self.kind = "label"
            self.is_label = True
            return
        parts = t.split(None, 1)
        self.op = parts[0]
        rest = parts[1] if len(parts) > 1 else ""
        ops = [o.strip() for o in rest.split(",")] if rest else []
        mods = ""
        if ops:
            last = ops[-1].split()
            ops[-1] = last[0] if last else ""
            mods = " ".join(last[1:])
        self.parse(ops, mods)

    def _add(self, s, tok):
        c, idx = _regs(tok)
        if c is None:
            return
        for i in idx:
            s.add((c, i))

    def parse(self, ops, mods):
        op = self.op
        if op == "s_nop":
            self.kind = "nop"
            self.nop = int(ops[0], 0) + 1
            return
        if op.startswith("s_"):
            if op.startswith("s_cbranch") or op in ("s_branch", "s_setpc_b64", "s_swappc_b64", "s_endpgm"):
                self.kind = "branch"
                if "exec" in op:
                    self.rd.add(("exec", 0))
                if "vcc" in op:
                    self.rd.add(("vcc", 0))
                return
            if op in ("s_waitcnt", "s_barrier", "s_setprio", "s_sleep"):
                self.kind = "misc"
                return
            if op.startswith("s_load") or op.startswith("s_buffer_load") or op in ("s_memtime", "s_memrealtime"):
                self.kind = "smem"
                self._add(self.wr, ops[0])
                for o in ops[1:]:
                    self._add(self.rd, o)
                return
            self.kind = "salu"
            if op.startswith("s_cmp") or op.startswith("s_bitcmp"):
                for o in ops:
                    self._add(self.rd, o)
                return
            self._add(self.wr, ops[0])
            for o in ops[1:]:
                self._add(self.rd, o)
            if "saveexec" in op:
                self.wr.add(("exec", 0))
                self.rd.add(("exec", 0))
            return
        if op.startswith("v_mfma"):
            self.kind = "mfma"
            self.passes = 8 if "32x32" in op else 4
            self._add(self.wr, ops[0])
            self._add(self.mfma_d, ops[0])
            self._add(self.rd, ops[1])
            self._add(self.rd, ops[2])
            self._add(self.rd, ops[3])
            self._add(self.mfma_c, ops[3])
            return
        if op.startswith("v_"):
            self.kind = "trans" if op.replace("_e32", "").replace("_e64", "") in TRANS else "valu"
            if "dpp" in op or "row_" in mods or "quad_perm" in mods or "wave_" in mods:
                self.dpp = True
            if op.startswith("v_cmp"):
                self._add(self.wr, ops[0])
                for o in ops[1:]:
                    self._add(self.rd, o)
                return
            if op in ("v_readlane_b32", "v_readfirstlane_b32"):
                self.kind = "readlane"
                self._add(self.wr, ops[0])
                self._add(self.rd, ops[1])
                if len(ops) > 2:
                    self._add(self.lanesel, ops[2])
                return
            if op == "v_writelane_b32":
                self._add(self.wr, ops[0])
                self._add(self.rd, ops[0])
                self._add(self.rd, ops[1])
                self._add(self.lanesel, ops[2])
                return
            if op.startswith("v_permlane"):
                self.kind = "permlane"
                for o in ops[:2]:
                    self._add(self.wr, o)
                    self._add(self.rd, o)
                return
            self._add(self.wr, ops[0])
            k = 1
            if "_co_" in op:
                self._add(self.wr, ops[1])
                k = 2
            for o in ops[k:]:
                self._add(self.rd, o)
            if op.startswith("v_fmac") or op.startswith("v_pk_fmac") or op.startswith("v_dot2c"):
                self._add(self.rd, ops[0])
            if op.startswith("v_cndmask") and len(ops) == 3:
                self.rd.add(("vcc", 0))
            return
        if op.startswith("ds_"):
            self.kind = "ds"
            if op.startswith("ds_read") or op.startswith("ds_bpermute") or op.startswith("ds_permute") or op.startswith("ds_swizzle"):
                self._add(self.wr, ops[0])
                for o in ops[1:]:
                    self._add(self.rd, o)
            elif "_rtn" in op:
                self._add(self.wr, ops[0])
                for o in ops[1:]:
                    self._add(self.rd, o)
            else:
                for o in ops:
                    self._add(self.rd, o)
            return
        if op.startswith("buffer_") or op.startswith("global_"):
            self.kind = "vmem"
            is_lds = " lds" in (" " + mods) or "_lds_" in op
            if is_lds:
                self.ldsdma = True
                self.rd.add(("m0", 0))
                for o in ops:
                    self._add(self.rd, o)
            elif "_load" in op:
                self._add(self.wr, ops[0])
                for o in ops[1:]:
                    self._add(self.rd, o)
            elif "_store" in op:
                if op.startswith("global_"):
                    self._add(self.store_data, ops[1])
                else:
                    self._add(self.store_data, ops[0])
                for o in ops:
                    self._add(self.rd, o)
            else:
                for o in ops:
                    self._add(self.rd, o)
                if "sc0" in mods:
                    self._add(self.wr, ops[0])
            return
        raise ValueError("unknown instruction: " + self.text)


class Gen:
    def __init__(self):
        self.lines = []
        self._lab = 0

    def __call__(self, text):
        for l in text.split("\n"):
            l = l.strip()
            if l:
                self.lines.append(l)

    def raw(self, text):
        self.lines.append(text)

    def label(self, name):
        self.lines.append(name + ":")

    def newlabel(self, stem="L"):
        self._lab += 1
        return f"{stem}_{self._lab}"

    def finalize(self):
        out = []
        ins_list = [Ins(l) for l in self.lines]
        pos = 0
        valu_sgpr = {}
        valu_vgpr = {}
        trans_vgpr = {}
        salu_m0 = None
        mfma_d = {}
        mfma_c = {}
        store_d = {}

        def need(ins):
            req = pos
            def upd(p, w):
                nonlocal req
                if p is not None and p + w + 1 > req:
                    req = p + w + 1
            is_valu = ins.kind in ("valu", "trans", "readlane", "permlane")
            if is_valu or ins.kind == "mfma":
                for r in ins.rd:
                    if r[0] in ("s", "vcc"):
                        upd(valu_sgpr.get(r), 2)
                for r in ins.lanesel:
                    upd(valu_sgpr.get(r), 4)
            if ins.kind == "vmem":
                for r in ins.rd:
                    if r[0] in ("s", "vcc"):
                        upd(valu_sgpr.get(r), 5)
            if ins.kind in ("salu", "branch", "smem"):
                for r in ins.rd:
                    if r[0] in ("s", "vcc"):
                        upd(valu_sgpr.get(r), 2)
            if ins.kind == "readlane":
                for r in ins.rd:
                    upd(valu_vgpr.get(r), 1)
            if is_valu and ins.kind != "trans" or ins.kind in ("vmem", "ds"):
                for r in ins.rd:
                    upd(trans_vgpr.get(r), 1)
            if ins.dpp or ins.kind == "permlane":
                for r in ins.rd:
                    upd(valu_vgpr.get(r), 2)
            if ins.ldsdma and salu_m0 is not None:
                upd(salu_m0, 1)
            if ins.kind == "mfma":
                for r in ins.rd:
                    upd(valu_vgpr.get(r), 2)
            if ins.kind == "mfma":
                cset = frozenset(ins.mfma_c)
                for r in ins.rd:
                    if r in mfma_d:
                        p, ps, dset = mfma_d[r]
                        if r in ins.mfma_c:
                            if cset == dset:
                                w = 0
                            else:
                                w = {4: 6, 8: 10}[ps]
                        else:
                            w = {4: 8, 8: 12}[ps]
                        upd(p, w)
                for r in ins.wr:
                    if r in mfma_d and r not in ins.mfma_c:
                        p, ps, dset = mfma_d[r]
                        upd(p, {4: 8, 8: 12}[ps])
            elif ins.kind in ("valu", "trans", "readlane", "permlane", "vmem", "ds"):
                for r in (ins.rd | ins.wr):
                    if r in mfma_d:
                        p, ps, dset = mfma_d[r]
                        upd(p, {4: 8, 8: 12}[ps])
            if is_valu:
                for r in ins.wr:
                    if r in mfma_c:
                        p, ps = mfma_c[r]
                        upd(p, {4: 3, 8: 7}[ps])
            if ins.kind != "none":
                for r in ins.wr:
                    if r in store_d:
                        upd(store_d[r], 2 if is_valu else 1)
            return req

        for ins in ins_list:
            if ins.kind in ("none",):
                out.append(ins.text)
                continue
            if ins.kind == "label":
                out.append(ins.text)
                continue
            if ins.kind == "nop":
                out.append("  " + ins.text)
                pos += ins.nop
                continue
            req = need(ins)
            if ins.kind == "branch" and ins.op != "s_endpgm":
                for d, w in ((valu_sgpr, 5), (valu_vgpr, 2), (trans_vgpr, 1), (store_d, 2)):
                    for p in d.values():
                        req = max(req, p + w)
                for (p, ps, _) in mfma_d.values():
                    req = max(req, p + {4: 8, 8: 12}[ps])
                if salu_m0 is not None:
                    req = max(req, salu_m0 + 1)
            while req > pos:
                k = min(req - pos, 16)
                out.append(f"  s_nop {k - 1}")
                pos += k
            out.append("  " + ins.text)
            if ins.kind in ("valu", "trans", "readlane", "permlane"):
                for r in ins.wr:
                    if r[0] in ("s", "vcc"):
                        valu_sgpr[r] = pos
                    elif r[0] in ("v", "a"):
                        valu_vgpr[r] = pos
                        if ins.kind == "trans":
                            trans_vgpr[r] = pos
                        else:
                            trans_vgpr.pop(r, None)
            else:
                for r in ins.wr:
                    valu_sgpr.pop(r, None)
                    valu_vgpr.pop(r, None)
                    trans_vgpr.pop(r, None)
            if ins.kind == "salu" and ("m0", 0) in ins.wr:
                salu_m0 = pos
            if ins.kind == "mfma":
                ds = frozenset(ins.mfma_d)
                for r in ins.mfma_d:
                    mfma_d[r] = (pos, ins.passes, ds)
                for r in ins.mfma_c:
                    mfma_c[r] = (pos, ins.passes)
            else:
                for r in ins.wr:
                    mfma_d.pop(r, None)
            if ins.store_data and len(ins.store_data) >= 3:
                for r in ins.store_data:
                    store_d[r] = pos
            pos += 1
        return "\n".join(out) + "\n"
```

```python
import sys
from asmlib import Gen

N, E, D = 12500, 400000, 128
NB, BN = 250, 50
P, C = 128, 3125
NG = 7

OFF_B = 0
OFF_AT = OFF_B + N * 256
OFF_P16 = OFF_AT + NB * NG * 2048
OFF_P4 = OFF_P16 + E * 16
OFF_TAB = OFF_P4 + E * 4
OFF_WHF = OFF_TAB + NB * P * 4
OFF_WF5 = OFF_WHF + 65536
WS_END = OFF_WF5 + 2048
WS_BYTES = 268435456

C1 = 0xBFB8AA3B
NLN2 = 0xBF317218

K1 = "egnn_prep_kernel"
K2 = "standalone__cheap_equivariant_egnn__graph_kernel"


def srd(g, s, lo, nbytes):
    g(f"""
    s_mov_b32 s{s}, s{lo}
    s_mov_b32 s{s+1}, s{lo+1}
    s_mov_b32 s{s+2}, {nbytes}
    s_mov_b32 s{s+3}, 0x00020000
    """)


def k1(g):
    S_H, S_POS, S_EA, S_SRC, S_DST, S_WE, S_WH, S_WS = 20, 24, 28, 32, 36, 40, 44, 48
    g.label(K1)
    g(f"""
    s_cmp_ge_u32 s2, 254
    s_cbranch_scc1 K1_END
    s_load_dwordx2 s[4:5], s[0:1], 0
    s_load_dwordx2 s[6:7], s[0:1], 8
    s_load_dwordx2 s[8:9], s[0:1], 16
    s_load_dwordx2 s[10:11], s[0:1], 24
    s_load_dwordx2 s[12:13], s[0:1], 32
    s_load_dwordx2 s[14:15], s[0:1], 40
    s_load_dwordx2 s[16:17], s[0:1], 56
    s_load_dwordx2 s[18:19], s[0:1], 80
    v_and_b32 v1, 63, v0              ; lane
    v_lshrrev_b32 v2, 6, v0           ; wave
    v_readfirstlane_b32 s60, v2
    s_waitcnt lgkmcnt(0)
    """)
    srd(g, S_H, 4, N * 256)
    srd(g, S_POS, 6, N * 6)
    srd(g, S_EA, 8, E * 8)
    srd(g, S_SRC, 10, E * 4)
    srd(g, S_DST, 12, E * 4)
    srd(g, S_WE, 14, 261 * 256)
    srd(g, S_WH, 16, 256 * 256)
    srd(g, S_WS, 18, WS_BYTES)
    g("""
    s_cmp_lt_u32 s2, 128
    s_cbranch_scc1 K1_PART
    s_cmp_lt_u32 s2, 253
    s_cbranch_scc1 K1_GEMM
    s_branch K1_WPREP
    """)

    R = 7
    vD = lambda r: 8 + r
    vS = lambda r: 16 + r
    vEA = lambda r: 24 + 2 * r
    vB = lambda r: 40 + r
    vL = lambda r: 48 + r
    vRk = lambda r: 56 + r
    vPD = lambda r: 64 + 2 * r
    vPS = lambda r: 80 + 2 * r
    g.label("K1_PART")
    g(f"""
    s_mul_i32 s61, s2, {C}            ; e0
    v_lshlrev_b32 v3, 2, v0           ; tid*4
    v_lshlrev_b32 v4, 3, v0           ; tid*8
    v_mov_b32 v5, 0
    v_cmp_gt_u32 vcc, 256, v0
    s_and_saveexec_b64 s[62:63], vcc
    ds_write_b32 v3, v5
    s_mov_b64 exec, s[62:63]
    v_cmp_gt_u32 s[64:65], {C - 6 * 512}, v0
    s_lshl_b32 s66, s61, 2            ; e0*4
    s_lshl_b32 s67, s61, 3            ; e0*8
    """)
    for r in range(R):
        g(f"s_add_u32 s68, s66, {r * 2048}")
        g(f"buffer_load_dword v{vD(r)}, v3, s[{S_DST}:{S_DST+3}], s68 offen")
    for r in range(R):
        g(f"s_add_u32 s68, s66, {r * 2048}")
        g(f"buffer_load_dword v{vS(r)}, v3, s[{S_SRC}:{S_SRC+3}], s68 offen")
    for r in range(R):
        g(f"s_add_u32 s68, s67, {r * 4096}")
        g(f"buffer_load_dwordx2 v[{vEA(r)}:{vEA(r)+1}], v4, s[{S_EA}:{S_EA+3}], s68 offen")
    g("""
    s_waitcnt lgkmcnt(0)
    s_barrier
    s_waitcnt vmcnt(14)
    v_mov_b32 v6, 1
    """)
    for r in range(R):
        g(f"""
        v_mul_u32_u24 v7, 5243, v{vD(r)}
        v_lshrrev_b32 v{vB(r)}, 18, v7
        v_mul_u32_u24 v7, 50, v{vB(r)}
        v_sub_u32 v{vL(r)}, v{vD(r)}, v7
        v_lshlrev_b32 v7, 2, v{vB(r)}
        """)
        if r == R - 1:
            lab = g.newlabel("K1_skipA")
            g(f"""
            s_mov_b64 s[62:63], exec
            s_and_b64 exec, exec, s[64:65]
            s_cbranch_execz {lab}
            ds_add_rtn_u32 v{vRk(r)}, v7, v6
            """)
            g.label(lab)
            g("s_mov_b64 exec, s[62:63]")
        else:
            g(f"ds_add_rtn_u32 v{vRk(r)}, v7, v6")
    for r in range(R):
        g(f"""
        v_mul_u32_u24 v7, 6, v{vD(r)}
        v_and_b32 v7, 0xfffffffc, v7
        buffer_load_dwordx2 v[{vPD(r)}:{vPD(r)+1}], v7, s[{S_POS}:{S_POS+3}], 0 offen
        """)
    g("s_waitcnt vmcnt(14)")
    for r in range(R):
        g(f"""
        v_mul_u32_u24 v7, 6, v{vS(r)}
        v_and_b32 v7, 0xfffffffc, v7
        buffer_load_dwordx2 v[{vPS(r)}:{vPS(r)+1}], v7, s[{S_POS}:{S_POS+3}], 0 offen
        """)
    g("""
    s_waitcnt lgkmcnt(0)
    s_barrier
    s_cmp_lg_u32 s60, 0
    s_cbranch_scc1 K1_SCANDONE
    """)
    g("""
    v_lshlrev_b32 v100, 4, v1
    ds_read_b128 v[104:107], v100
    s_waitcnt lgkmcnt(0)
    v_add_u32 v108, v104, v105        ; c0+c1
    v_add_u32 v109, v108, v106        ; +c2
    v_add_u32 v110, v109, v107
    v_mov_b32 v111, v110
    v_add_u32_dpp v111, v111, v111 row_shr:1 row_mask:0xf bank_mask:0xf bound_ctrl:0
    v_add_u32_dpp v111, v111, v111 row_shr:2 row_mask:0xf bank_mask:0xf bound_ctrl:0
    v_add_u32_dpp v111, v111, v111 row_shr:4 row_mask:0xf bank_mask:0xf bound_ctrl:0
    v_add_u32_dpp v111, v111, v111 row_shr:8 row_mask:0xf bank_mask:0xf bound_ctrl:0
    v_add_u32_dpp v111, v111, v111 row_bcast:15 row_mask:0xa bank_mask:0xf
    v_add_u32_dpp v111, v111, v111 row_bcast:31 row_mask:0xc bank_mask:0xf
    v_sub_u32 v112, v111, v110        ; exclusive
    v_add_u32 v113, v112, v104
    v_add_u32 v114, v112, v108
    v_add_u32 v115, v112, v109
    ds_write_b128 v100, v[112:115] offset:1024
    s_waitcnt lgkmcnt(0)
    """)
    g.label("K1_SCANDONE")
    g("s_barrier")
    g(f"""
    v_cmp_gt_u32 vcc, {NB}, v0
    s_and_saveexec_b64 s[62:63], vcc
    s_cbranch_execz K1_NOTAB
    ds_read_b32 v100, v3
    ds_read_b32 v101, v3 offset:1024
    v_lshlrev_b32 v102, 9, v0         ; tid*512
    s_lshl_b32 s68, s2, 2
    s_add_u32 s68, s68, {OFF_TAB}
    s_waitcnt lgkmcnt(0)
    v_lshl_or_b32 v100, v100, 16, v101
    buffer_store_dword v100, v102, s[{S_WS}:{S_WS+3}], s68 offen
    """)
    g.label("K1_NOTAB")
    g("s_mov_b64 exec, s[62:63]")
    for r in range(R):
        g(f"""
        v_lshlrev_b32 v7, 2, v{vB(r)}
        ds_read_b32 v{vB(r)}, v7 offset:1024
        """)
    g(f"""
    s_lshl_b32 s68, s61, 4
    s_add_u32 s68, s68, {OFF_P16}
    s_add_u32 s69, s66, {OFF_P4}
    s_waitcnt vmcnt(0) lgkmcnt(0)
    """)
    for r in range(R):
        pd, ps = vPD(r), vPS(r)
        if r == R - 1:
            lab = g.newlabel("K1_skipB")
            g(f"""
            s_mov_b64 s[62:63], exec
            s_and_b64 exec, exec, s[64:65]
            s_cbranch_execz {lab}
            """)
        g(f"""
        v_add_u32 v{vRk(r)}, v{vB(r)}, v{vRk(r)}
        v_and_b32 v7, 1, v{vD(r)}
        v_lshlrev_b32 v7, 4, v7
        v_lshrrev_b64 v[{pd}:{pd+1}], v7, v[{pd}:{pd+1}]
        v_and_b32 v7, 1, v{vS(r)}
        v_lshlrev_b32 v7, 4, v7
        v_lshrrev_b64 v[{ps}:{ps+1}], v7, v[{ps}:{ps+1}]
        v_lshlrev_b32 v100, 16, v{pd}                  ; xd
        v_and_b32 v101, 0xffff0000, v{pd}              ; yd
        v_lshlrev_b32 v102, 16, v{pd+1}                ; zd
        v_lshlrev_b32 v103, 16, v{ps}
        v_and_b32 v104, 0xffff0000, v{ps}
        v_lshlrev_b32 v105, 16, v{ps+1}
        v_sub_f32 v100, v100, v103                     ; dx
        v_sub_f32 v101, v101, v104                     ; dy
        v_sub_f32 v102, v102, v105                     ; dz
        v_cvt_pk_bf16_f32 v111, v101, v102
        v_cvt_pk_bf16_f32 v103, v100, v100
        v_lshlrev_b32 v100, 16, v103                   ; dxr
        v_lshlrev_b32 v101, 16, v111                   ; dyr
        v_and_b32 v102, 0xffff0000, v111               ; dzr
        v_mul_f32 v103, v100, v100
        v_mul_f32 v104, v101, v101
        v_mul_f32 v105, v102, v102
        v_cvt_pk_bf16_f32 v103, v103, v104
        v_cvt_pk_bf16_f32 v105, v105, v105             ; sz
        v_lshlrev_b32 v104, 16, v103
        v_and_b32 v103, 0xffff0000, v103
        v_lshlrev_b32 v105, 16, v105
        v_add_f32 v103, v104, v103
        v_add_f32 v103, v103, v105                     ; d2 (f32)
        v_cvt_pk_bf16_f32 v110, v103, v100             ; w2 = d2 | dx<<16
        v_mov_b32 v108, v{vEA(r)}
        v_mov_b32 v109, v{vEA(r)+1}
        v_lshlrev_b32 v7, 4, v{vRk(r)}
        buffer_store_dwordx4 v[108:111], v7, s[{S_WS}:{S_WS+3}], s68 offen
        v_lshl_or_b32 v106, v{vS(r)}, 8, v{vL(r)}
        v_lshlrev_b32 v7, 2, v{vRk(r)}
        buffer_store_dword v106, v7, s[{S_WS}:{S_WS+3}], s69 offen
        """)
        if r == R - 1:
            g.label(lab)
            g("s_mov_b64 exec, s[62:63]")
    g("s_branch K1_END")

    vWF = lambda s, d: 8 + 4 * s + d
    vHF = lambda rt, s: 40 + 32 * rt + 4 * s
    vAC = lambda rt: 168 + 16 * rt
    g.label("K1_GEMM")
    g(f"""
    s_sub_u32 s61, s2, 128            ; q
    s_lshr_b32 s62, s60, 2            ; part
    s_and_b32 s63, s60, 3             ; t
    v_and_b32 v2, 31, v1              ; n / m
    v_lshrrev_b32 v3, 5, v1
    v_lshlrev_b32 v4, 11, v3
    v_lshlrev_b32 v5, 1, v2
    v_add_u32 v4, v4, v5
    s_lshl_b32 s64, s63, 6            ; 32t*2
    v_add_u32 v4, s64, v4
    s_lshl_b32 s65, s62, 15           ; part*128*256
    """)
    for s in range(8):
        g(f"s_add_u32 s66, s65, {s * 4096}")
        for j in range(8):
            g(f"buffer_load_ushort v{vAC(0) + 8 * s + j}, v4, s[{S_WE}:{S_WE+3}], s66 offen offset:{j * 256}")
    g("s_mul_i32 s67, s61, 100")
    for rt in range(4):
        row0 = 50 * (rt >> 1) + 32 * (rt & 1)
        g(f"""
        v_add_u32 v5, {row0}, v2
        v_add_u32 v5, s67, v5
        v_lshlrev_b32 v{232 + rt}, 8, v5            ; row*256
        v_lshlrev_b32 v6, 4, v3
        v_add_u32 v6, v{232 + rt}, v6
        """)
        for s in range(8):
            g(f"buffer_load_dwordx4 v[{vHF(rt, s)}:{vHF(rt, s)+3}], v6, s[{S_H}:{S_H+3}], 0 offen offset:{32 * s}")
    g("s_waitcnt vmcnt(32)")
    for s in range(8):
        for d in range(4):
            g(f"v_lshl_or_b32 v{vWF(s, d)}, v{vAC(0) + 8 * s + 2 * d + 1}, 16, v{vAC(0) + 8 * s + 2 * d}")
    g(f"""
    s_mov_b32 s70, 0x{C1:08x}
    s_waitcnt vmcnt(0)
    s_cmp_lg_u32 s62, 0
    s_cbranch_scc1 K1_GEMM_B
    """)
    for rt in range(4):
        for s in range(8):
            c = f"v[{vAC(rt)}:{vAC(rt)+15}]" if s else "0"
            g(f"v_mfma_f32_32x32x16_bf16 v[{vAC(rt)}:{vAC(rt)+15}], v[{vHF(rt, s)}:{vHF(rt, s)+3}], v[{vWF(s, 0)}:{vWF(s, 0)+3}], {c}")
    g(f"""
    v_lshlrev_b32 v4, 4, v2
    v_lshlrev_b32 v5, 3, v3
    v_add_u32 v4, v4, v5
    s_lshl_b32 s64, s63, 9            ; 32t*16
    v_add_u32 v4, s64, v4
    """)
    for rt in range(4):
        for u in range(4):
            grp = 4 * (rt & 1) + u
            if grp >= NG:
                continue
            a = vAC(rt) + 4 * u
            g(f"""
            v_mul_f32 v{a}, s70, v{a}
            v_mul_f32 v{a+1}, s70, v{a+1}
            v_mul_f32 v{a+2}, s70, v{a+2}
            v_mul_f32 v{a+3}, s70, v{a+3}
            v_cvt_pk_bf16_f32 v{a}, v{a}, v{a+1}
            v_cvt_pk_bf16_f32 v{a+1}, v{a+2}, v{a+3}
            s_mul_i32 s66, s61, {2 * NG * 2048}
            s_add_u32 s66, s66, {OFF_AT + ((rt >> 1) * NG + grp) * 2048}
            buffer_store_dwordx2 v[{a}:{a+1}], v4, s[{S_WS}:{S_WS+3}], s66 offen
            """)
    g("s_branch K1_END")
    g.label("K1_GEMM_B")
    for rt in range(4):
        for s in range(8):
            c = f"v[{vAC(rt)}:{vAC(rt)+15}]" if s else "0"
            g(f"v_mfma_f32_32x32x16_bf16 v[{vAC(rt)}:{vAC(rt)+15}], v[{vWF(s, 0)}:{vWF(s, 0)+3}], v[{vHF(rt, s)}:{vHF(rt, s)+3}], {c}")
    g(f"""
    v_cmp_gt_u32 s[72:73], {BN - 32}, v2
    v_lshlrev_b32 v5, 3, v3                      ; 8*hf
    s_lshl_b32 s64, s63, 6                       ; 32t*2
    s_add_u32 s64, s64, {OFF_B}
    """)
    for rt in range(4):
        g(f"v_add_u32 v4, v{232 + rt}, v5")
        if rt & 1:
            lab = g.newlabel("K1_skipC")
            g(f"""
            s_mov_b64 s[74:75], exec
            s_and_b64 exec, exec, s[72:73]
            s_cbranch_execz {lab}
            """)
        for u in range(4):
            a = vAC(rt) + 4 * u
            g(f"""
            v_mul_f32 v{a}, s70, v{a}
            v_mul_f32 v{a+1}, s70, v{a+1}
            v_mul_f32 v{a+2}, s70, v{a+2}
            v_mul_f32 v{a+3}, s70, v{a+3}
            v_cvt_pk_bf16_f32 v{a}, v{a}, v{a+1}
            v_cvt_pk_bf16_f32 v{a+1}, v{a+2}, v{a+3}
            buffer_store_dwordx2 v[{a}:{a+1}], v4, s[{S_WS}:{S_WS+3}], s64 offen offset:{16 * u}
            """)
        if rt & 1:
            g.label(lab)
            g("s_mov_b64 exec, s[74:75]")
    g("s_branch K1_END")

    g.label("K1_WPREP")
    g(f"""
    v_and_b32 v2, 31, v1
    v_lshrrev_b32 v3, 5, v1
    v_lshlrev_b32 v4, 11, v3          ; 8*kh*256
    v_lshlrev_b32 v5, 1, v2
    v_add_u32 v4, v4, v5              ; + n*2
    v_lshlrev_b32 v6, 4, v1           ; lane*16
    """)
    g(f"""
    s_lshr_b32 s61, s60, 1            ; t
    s_and_b32 s62, s60, 1
    s_lshl_b32 s62, s62, 3            ; 8*(w&1)
    s_lshl_b32 s63, s61, 6            ; 32t*2
    v_add_u32 v4, s63, v4
    s_lshl_b32 s64, s62, 12           ; s0*16*256
    s_lshl_b32 s65, s60, 13           ; 8w*1024
    s_add_u32 s65, s65, {OFF_WHF}
    """)
    for i in range(8):
        for j in range(8):
            g(f"buffer_load_ushort v{64 + 8*i + j}, v4, s[{S_WH}:{S_WH+3}], s64 offen offset:{j * 256}")
        g("s_add_u32 s64, s64, 4096")
    g(f"""
    s_cmp_gt_u32 s60, 1
    s_cbranch_scc1 K1_W_NOF5
    s_lshl_b32 s66, s60, 7            ; 64w*2
    v_lshlrev_b32 v40, 1, v1
    v_add_u32 v40, s66, v40
    """)
    g("s_mov_b32 s67, 65536")
    for k in range(5):
        g(f"buffer_load_ushort v{41 + k}, v40, s[{S_WE}:{S_WE+3}], s67 offen offset:{256 * k}")
    g(f"""
    s_mov_b32 s70, 0x{C1:08x}
    s_waitcnt vmcnt(0)
    """)
    for k in range(5):
        g(f"v_lshlrev_b32 v{41+k}, 16, v{41+k}")
        g(f"v_mul_f32 v{41+k}, s70, v{41+k}")
    g(f"""
    v_mov_b32 v46, 0
    v_cvt_pk_bf16_f32 v48, v42, v43
    v_cvt_pk_bf16_f32 v49, v44, v45
    v_cvt_pk_bf16_f32 v50, v41, v46
    v_mov_b32 v51, 0
    s_lshl_b32 s66, s60, 10           ; 64w*16
    s_add_u32 s66, s66, {OFF_WF5}
    buffer_store_dwordx4 v[48:51], v6, s[{S_WS}:{S_WS+3}], s66 offen
    """)
    g.label("K1_W_NOF5")
    g("s_waitcnt vmcnt(0)")
    for i in range(8):
        for d in range(4):
            g(f"v_lshl_or_b32 v{8 + 4*i + d}, v{64 + 8*i + 2*d + 1}, 16, v{64 + 8*i + 2*d}")
    for i in range(8):
        g(f"buffer_store_dwordx4 v[{8+4*i}:{11+4*i}], v6, s[{S_WS}:{S_WS+3}], s65 offen offset:{1024 * i}" if i < 4 else
          f"buffer_store_dwordx4 v[{8+4*i}:{11+4*i}], v7, s[{S_WS}:{S_WS+3}], s65 offen offset:{1024 * (i - 4)}")
        if i == 3:
            g("v_add_u32 v7, 4096, v6")
    g.label("K1_END")
    g("s_endpgm")


def kd(name, vgpr, sgpr=102):
    return f""".amdhsa_kernel {name}
  .amdhsa_next_free_vgpr {vgpr}
  .amdhsa_next_free_sgpr {sgpr}
  .amdhsa_accum_offset {vgpr}
  .amdhsa_group_segment_fixed_size 0
  .amdhsa_kernarg_size 88
  .amdhsa_user_sgpr_count 2
  .amdhsa_user_sgpr_kernarg_segment_ptr 1
  .amdhsa_system_sgpr_workgroup_id_x 1
.end_amdhsa_kernel
"""


def header():
    ref = open("standalone__cheap_equivariant_egnn__graph.s.ref").read()
    return ref.split("; Override launch geometry")[0]


def build(k2fn=None, k2_lds=0, k2_grid=250):
    txt = header()
    txt += f"; @launch kernel={K1} grid=(254,1,1) block=(512,1,1) lds=2048\n"
    if k2fn:
        txt += f"; @launch kernel={K2} grid=({k2_grid},1,1) block=(512,1,1) lds={k2_lds}\n"
    txt += '.amdgcn_target "amdgcn-amd-amdhsa--gfx950"\n.text\n'
    g = Gen()
    k1(g)
    txt += f".globl {K1}\n.p2align 8\n.type {K1},@function\n" + g.finalize()
    if k2fn:
        g2 = Gen()
        k2fn(g2)
        txt += f".globl {K2}\n.p2align 8\n.type {K2},@function\n" + g2.finalize()
    txt += '.section .rodata,"a"\n.p2align 6\n' + kd(K1, 240)
    if k2fn:
        txt += ".p2align 6\n" + kd(K2, 256)
    return txt


if __name__ == "__main__":
    out = sys.argv[1] if len(sys.argv) > 1 else "k1.s"
    open(out, "w").write(build())
    print("wrote", out)
```

```python
from gen import *
import os
OPT = set(os.environ.get('K2OPT', '').split(','))

L_BST = 0
L_REC = 65536
CAPT = 63
CAP = CAPT * 32
L_META = L_REC + CAP * 16
L_SSC = L_META + CAP * 4
L_MACC = L_SSC + 8 * 2048
MROW = 528
L_AT = L_MACC + BN * MROW
L_LUT = L_AT + NG * 2048
L_GCNT = L_LUT + 128
L_GBASE = L_GCNT + 32
L_BLK = L_GBASE + 32
L_END = L_BLK + 512
assert L_END <= 163840, L_END
FASTMAX = CAP - NG * 31

vRD = lambda s: 4 + s
vCS = lambda j: 12 + j
vI0, vI1 = 20, 24
vWF = lambda t: 28 + 4 * t
vWX = lambda t: 44 + t
vSrd, vSwr, vSz, vMask, vOr, vMetaRd, vMe, vRecS, vRecF, vFl, vTinfo, vFlp = 48, 49, 50, 51, 52, 53, 54, 55, 56, 57, 58, 59
vZero4 = 60
vSeg = lambda t: 64 + 16 * t
vRow = lambda s: 128 + 4 * s
vZa, vZb, vT, vP = 160, 176, 192, 208
vF, vS = 216, 220
vMeta = lambda j: 228 + j
vMeV, vSv, vFaddr, vSwaddr = 236, 237, 238, 239
vTmp = lambda i: 240 + i
vPay16 = lambda i: 64 + 4 * i
vPay4 = lambda i: 128 + i
vRank = lambda i: 144 + i

S_WS, S_H, S_OUT, S_POS, S_WX = 16, 20, 24, 28, 32
sW, sNB = 36, 37
sTE = lambda g: 38 + g
sT, sTau, sTau1, sG, sNV, sTn, sGn, sNVn, sHas = 46, 47, 48, 49, 50, 51, 52, 53, 54
sBST, sKH, sMHI = 55, 56, 58
sL31 = 14
sEndG = 45
sMaskSlot = lambda i: 64 + 2 * i


def onehot4(g, dst, vx, vlo, vhi):
    for d in range(4):
        g(f"""
        v_cmp_eq_u32 vcc, {2*d}, v{vx}
        v_cndmask_b32 v{dst+d}, 0, v{vlo}, vcc
        v_cmp_eq_u32 vcc, {2*d+1}, v{vx}
        v_cndmask_b32 v{dst+d}, v{dst+d}, v{vhi}, vcc
        """)


def mfma(g, d, a, b, c):
    cs = "0" if c is None else f"v[{c}:{c+15}]"
    g(f"v_mfma_f32_32x32x16_bf16 v[{d}:{d+15}], v[{a}:{a+3}], v[{b}:{b+3}], {cs}")


def zmfma(g, t, z):
    mfma(g, z, vF, vWF(t), None)
    mfma(g, z, vRow(2 * t), vI0, z)
    mfma(g, z, vRow(2 * t + 1), vI1, z)


def silu(g, z):
    if 'nosilu' in OPT:
        for i in range(8): g(f"v_cvt_pk_bf16_f32 v{vP+i}, v{z+2*i}, v{z+2*i+1}")
        return
    for i in range(16): g(f"v_exp_f32 v{vT+i}, v{z+i}")
    for i in range(16): g(f"v_add_f32 v{vT+i}, 1.0, v{vT+i}")
    for i in range(16): g(f"v_rcp_f32 v{vT+i}, v{vT+i}")
    for i in range(16): g(f"v_mul_f32 v{vT+i}, v{z+i}, v{vT+i}")
    for i in range(8): g(f"v_cvt_pk_bf16_f32 v{vP+i}, v{vT+2*i}, v{vT+2*i+1}")


def segmfma(g, t):
    mfma(g, vSeg(t), vS, vP, vSeg(t))
    mfma(g, vSeg(t), vS + 4, vP + 4, vSeg(t))


def prep_reads(g, st):
    g(f"""
    s_lshl_b32 s59, s{st}, 7
    s_lshl_b32 s60, s{st}, 9
    v_add_u32 v{vTmp(0)}, s59, v{vMetaRd}
    v_add_u32 v{vTmp(1)}, s59, v{vMe}
    v_add_u32 v{vTmp(2)}, s60, v{vRecS}
    ds_read_b128 v[{vMeta(0)}:{vMeta(3)}], v{vTmp(0)}
    ds_read_b128 v[{vMeta(4)}:{vMeta(7)}], v{vTmp(0)} offset:16
    ds_read_b32 v{vMeV}, v{vTmp(1)}
    ds_read_b32 v{vSv}, v{vTmp(2)}
    """)


def prep_zero(g):
    g(f"""
    ds_write_b128 v{vSz}, v[{vZero4}:{vZero4+3}]
    ds_write_b128 v{vSz}, v[{vZero4}:{vZero4+3}] offset:1024
    """)


def prep_issue(g, st, snv):
    for j in range(8):
        g(f"v_and_or_b32 v{vMeta(j)}, v{vMeta(j)}, s{sMHI}, v{vCS(j)}")
    for j in range(8):
        g(f"""
        s_add_u32 m0, s{sBST}, {1024 * j}
        buffer_load_dwordx4 v{vMeta(j)}, s[{S_WS}:{S_WS+3}], 0 offen lds
        """ if 'nodma' not in OPT else "")
    g(f"""
    v_and_b32 v{vTmp(0)}, 7, v{vMeV}                          ; slot
    s_mov_b32 s59, {L_LUT}
    v_lshl_add_u32 v{vTmp(1)}, v{vTmp(0)}, 4, s59
    s_lshl_b32 s60, s{st}, 9
    v_add_u32 v{vTmp(2)}, s60, v{vRecF}
    v_cndmask_b32 v{vFaddr}, v{vTmp(1)}, v{vTmp(2)}, s[{sKH}:{sKH+1}]
    v_lshl_add_u32 v{vSwaddr}, v{vTmp(0)}, 8, v{vSwr}
    v_and_or_b32 v{vSv}, v{vSv}, v{vMask}, v{vOr}
    v_cmp_gt_u32 vcc, s{snv}, v2
    s_mov_b64 exec, vcc
    ds_write_b16 v{vSwaddr}, v{vSv}
    ds_write_b16_d16_hi v{vSwaddr}, v{vSv} offset:64
    s_mov_b64 exec, -1
    """)


def load_wf(g):
    g(f"""
    s_lshl_b32 s59, s{sG}, 11
    s_add_u32 s59, s59, {L_AT}
    v_lshlrev_b32 v{vTmp(0)}, 4, v2
    v_add_u32 v{vTmp(0)}, s59, v{vTmp(0)}
    s_mov_b64 exec, 0xffffffff
    """)
    for t in range(4):
        g(f"ds_read_b128 v[{vWF(t)}:{vWF(t)+3}], v{vTmp(0)} offset:{512 * t}")
    g("s_mov_b64 exec, -1")


def flush_common(g):
    for i in range(4):
        for x in range(1, 4):
            d = vT + 3 * i + (x - 1)
            g(f"v_mul_f32 v{d}, v{vWX(0)}, v{vSeg(0) + 4*i + x}")
            for t in range(1, 4):
                g(f"v_fmac_f32 v{d}, v{vWX(t)}, v{vSeg(t) + 4*i + x}")
    for sh in (1, 2, 4, 8):
        for k in range(12):
            g(f"v_add_f32_dpp v{vT+k}, v{vT+k}, v{vT+k} row_shr:{sh} row_mask:0xf bank_mask:0xf bound_ctrl:0")
    for k in range(12):
        g(f"v_add_f32_dpp v{vT+k}, v{vT+k}, v{vT+k} row_bcast:15 row_mask:0xa bank_mask:0xf")


def flush_mid(g):
    flush_common(g)
    g(f"""
    s_mul_i32 s59, s{sG}, {8 * MROW}
    v_add_u32 v{vTmp(0)}, s59, v{vFl}
    v_add_u32 v{vTmp(1)}, s59, v{vFlp}
    """)
    for t in range(4):
        for i in range(4):
            g(f"ds_read_b32 v{vZa + 4*t + i}, v{vTmp(0)} offset:{2 * i * MROW + 128 * t}")
    g(f"s_mov_b64 exec, s[{sL31}:{sL31+1}]")
    for i in range(4):
        for x in range(3):
            g(f"ds_read_b32 v{vZb + 3*i + x}, v{vTmp(1)} offset:{2 * i * MROW + 512 + 4 * x}")
    g("s_waitcnt lgkmcnt(0)")
    for i in range(4):
        for x in range(3):
            g(f"v_add_f32 v{vZb + 3*i + x}, v{vZb + 3*i + x}, v{vT + 3*i + x}")
    for i in range(4):
        for x in range(3):
            g(f"ds_write_b32 v{vTmp(1)}, v{vZb + 3*i + x} offset:{2 * i * MROW + 512 + 4 * x}")
    g("s_mov_b64 exec, -1")
    for t in range(4):
        for i in range(4):
            g(f"v_add_f32 v{vZa + 4*t + i}, v{vZa + 4*t + i}, v{vSeg(t) + 4*i}")
    for t in range(4):
        for i in range(4):
            g(f"ds_write_b32 v{vTmp(0)}, v{vZa + 4*t + i} offset:{2 * i * MROW + 128 * t}")


def flush_end(g):
    flush_common(g)
    g(f"""
    s_sub_u32 s59, s{sBST}, {L_MACC}
    v_add_u32 v{vTmp(0)}, s59, v{vFl}
    v_add_u32 v{vTmp(1)}, s59, v{vFlp}
    """)
    for t in range(4):
        for i in range(4):
            g(f"ds_write_b32 v{vTmp(0)}, v{vSeg(t) + 4*i} offset:{2 * i * MROW + 128 * t}")
    g(f"s_mov_b64 exec, s[{sL31}:{sL31+1}]")
    for i in range(4):
        for x in range(3):
            g(f"ds_write_b32 v{vTmp(1)}, v{vT + 3*i + x} offset:{2 * i * MROW + 512 + 4 * x}")
    g("s_mov_b64 exec, -1")


def stamp(g, k, on):
    if on:
        g(f"""
        s_memtime s[98:99]
        s_waitcnt lgkmcnt(0)
        v_writelane_b32 v255, s98, {k}
        """)


def k2(g, dbg=None):
    st = dbg == "time"
    g.label(K2)
    g(f"""
    s_cmp_ge_u32 s2, {NB}
    s_cbranch_scc1 K2_END
    s_load_dwordx2 s[4:5], s[0:1], 0
    s_load_dwordx2 s[6:7], s[0:1], 8
    s_load_dwordx2 s[8:9], s[0:1], 48
    s_load_dwordx2 s[10:11], s[0:1], 64
    s_load_dwordx2 s[12:13], s[0:1], 80
    v_and_b32 v1, 63, v0
    v_and_b32 v2, 31, v1
    v_lshrrev_b32 v3, 5, v1
    v_lshrrev_b32 v192, 6, v0
    v_readfirstlane_b32 s{sW}, v192
    s_mul_i32 s{sNB}, s2, {BN}
    s_waitcnt lgkmcnt(0)
    """)
    stamp(g, 0, st)
    srd(g, S_H, 4, N * 256)
    srd(g, S_POS, 6, N * 6)
    srd(g, S_WX, 8, 256)
    srd(g, S_OUT, 10, 1637500 * 2)
    srd(g, S_WS, 12, WS_BYTES)
    vDraw, vTa, vTb = vTmp(0), vTmp(1), vTmp(2)
    g(f"""
    s_lshl_b32 s59, s2, 9
    s_add_u32 s59, s59, {OFF_TAB}
    v_and_b32 v193, 15, v1
    s_lshl_b32 s60, s{sW}, 6
    v_lshlrev_b32 v193, 2, v193
    v_add_u32 v193, s60, v193
    v_lshlrev_b32 v194, 2, v1                       ; lane*4
    v_lshlrev_b32 v195, 4, v1                       ; lane*16
    buffer_load_dword v{vDraw}, v193, s[{S_WS}:{S_WS+3}], s59 offen
    buffer_load_dword v{vTa}, v194, s[{S_WS}:{S_WS+3}], s59 offen
    buffer_load_dword v{vTb}, v194, s[{S_WS}:{S_WS+3}], s59 offen offset:256
    s_mul_i32 s61, s2, {NG * 2048}
    s_add_u32 s61, s61, {OFF_AT}
    s_lshl_b32 s62, s{sW}, 10
    s_add_u32 s63, s61, s62
    s_add_u32 m0, s62, {L_AT}
    buffer_load_dwordx4 v195, s[{S_WS}:{S_WS+3}], s63 offen lds
    s_cmp_ge_u32 s{sW}, {2 * NG - 8}
    s_cbranch_scc1 K2_noat2
    s_add_u32 s63, s63, 8192
    s_add_u32 m0, s62, {L_AT + 8192}
    buffer_load_dwordx4 v195, s[{S_WS}:{S_WS+3}], s63 offen lds
    """)
    g.label("K2_noat2")
    g(f"""
    v_lshlrev_b32 v193, 4, v2                       ; n*16
    s_mov_b32 s59, {OFF_WF5}
    """)
    for t in range(4):
        g(f"buffer_load_dwordx4 v[{vWF(t)}:{vWF(t)+3}], v193, s[{S_WS}:{S_WS+3}], s59 offen offset:{512 * t}")
    g("v_lshlrev_b32 v193, 1, v2")
    for t in range(4):
        g(f"buffer_load_ushort v{vWX(t)}, v193, s[{S_WX}:{S_WX+3}], 0 offen offset:{64 * t}")
    g(f"""
    s_lshl_b32 s{sBST}, s{sW}, 13                 ; stage base (L_BST = 0)
    s_mov_b32 s{sKH}, 0
    s_mov_b32 s{sKH+1}, -1
    s_mov_b32 s{sMHI}, 0xffffff00
    s_mov_b32 s{sL31}, 0x80000000
    s_mov_b32 s{sL31+1}, 0x80000000
    s_mov_b32 s{sEndG}, 7
    v_mov_b32 v{vZero4}, 0
    v_mov_b32 v{vZero4+1}, 0
    v_mov_b32 v{vZero4+2}, 0
    v_mov_b32 v{vZero4+3}, 0
    ; rho(m)*256 + stage
    v_and_b32 v192, 7, v2
    v_lshlrev_b32 v192, 2, v192
    v_lshrrev_b32 v193, 3, v2
    v_add_u32 v192, v192, v193
    v_lshlrev_b32 v192, 8, v192
    v_add_u32 v192, s{sBST}, v192
    v_and_b32 v193, 15, v2                          ; m&15
    """)
    for s in range(8):
        g(f"""
        v_add_u32 v194, {2*s}, v3
        v_xor_b32 v194, v194, v193
        v_lshl_add_u32 v{vRD(s)}, v194, 4, v192
        """)
    g("""
    v_and_b32 v193, 15, v1
    v_bfe_u32 v194, v1, 4, 1
    v_lshlrev_b32 v194, 3, v194
    v_xor_b32 v193, v193, v194
    """)
    for j in range(8):
        g(f"""
        v_xor_b32 v194, {j}, v193
        v_lshlrev_b32 v{vCS(j)}, 4, v194
        """)
    g(f"""
    v_mov_b32 v196, 0x3f80
    v_mov_b32 v197, 0x3f800000
    v_lshlrev_b32 v192, 3, v3
    v_sub_u32 v192, v2, v192                          ; n - 8kh
    """)
    onehot4(g, vI0, 192, 196, 197)
    g("v_subrev_u32 v192, 16, v192")
    onehot4(g, vI1, 192, 196, 197)
    g(f"""
    s_lshl_b32 s59, s{sW}, 11
    s_add_u32 s59, s59, {L_SSC}
    v_lshlrev_b32 v192, 6, v2
    v_lshl_add_u32 v192, v3, 4, v192
    v_add_u32 v{vSrd}, s59, v192                    ; m*64 + kh*16
    v_lshlrev_b32 v192, 4, v1
    v_add_u32 v{vSz}, s59, v192
    ; p(m)*2 + h*128
    v_lshrrev_b32 v192, 4, v2
    v_lshlrev_b32 v192, 5, v192                       ; 16*(m>>4)*2
    v_bfe_u32 v193, v2, 2, 1
    v_lshl_add_u32 v192, v193, 4, v192                  ; + 8*((m>>2)&1)*2
    v_bfe_u32 v193, v2, 3, 1
    v_lshl_add_u32 v192, v193, 3, v192                  ; + 4*((m>>3)&1)*2
    v_and_b32 v193, 3, v2
    v_lshl_add_u32 v192, v193, 1, v192                  ; + (m&3)*2
    v_lshl_add_u32 v192, v3, 7, v192                  ; + h*128
    v_add_u32 v{vSwr}, s59, v192
    v_mov_b32 v192, 0xffff0000
    v_mov_b32 v193, -1
    v_cndmask_b32 v{vMask}, v192, v193, s[{sKH}:{sKH+1}]
    v_mov_b32 v193, 0
    v_cndmask_b32 v{vOr}, v196, v193, s[{sKH}:{sKH+1}]
    v_lshrrev_b32 v192, 4, v1
    v_lshlrev_b32 v192, 5, v192
    v_add_u32 v{vMetaRd}, {L_META}, v192
    v_lshlrev_b32 v192, 2, v2
    v_add_u32 v{vMe}, {L_META}, v192
    v_lshlrev_b32 v192, 4, v2
    v_add_u32 v{vRecF}, {L_REC}, v192
    v_lshlrev_b32 v193, 2, v3
    v_add3_u32 v{vRecS}, v{vRecF}, v193, 8          ; + 8 + 4h
    v_mul_u32_u24 v192, {MROW}, v3
    v_add_u32 v{vFlp}, {L_MACC}, v192
    v_lshlrev_b32 v193, 2, v2
    v_add_u32 v{vFl}, v{vFlp}, v193
    """)
    g(f"""
    v_lshlrev_b32 v192, 4, v0
    v_add_u32 v192, {L_MACC}, v192
    ds_write_b128 v192, v[{vZero4}:{vZero4+3}]
    ds_write_b128 v192, v[{vZero4}:{vZero4+3}] offset:8192
    ds_write_b128 v192, v[{vZero4}:{vZero4+3}] offset:16384
    v_cmp_gt_u32 vcc, {(BN * MROW - 24576) // 16}, v0
    s_and_saveexec_b64 s[62:63], vcc
    s_cbranch_execz K2_z1
    ds_write_b128 v192, v[{vZero4}:{vZero4+3}] offset:24576
    """)
    g.label("K2_z1")
    g(f"""
    s_mov_b64 exec, s[62:63]
    s_cmp_lg_u32 s{sW}, 0
    s_cbranch_scc1 K2_z2
    """)
    onehot4(g, 204, 1, 196, 197)
    g(f"""
    v_cmp_gt_u32 vcc, 8, v1
    s_and_saveexec_b64 s[62:63], vcc
    v_lshlrev_b32 v192, 4, v1
    v_add_u32 v192, {L_LUT}, v192
    ds_write_b128 v192, v[204:207]
    v_lshlrev_b32 v192, 2, v1
    v_add_u32 v192, {L_GCNT}, v192
    ds_write_b32 v192, v{vZero4}
    s_mov_b64 exec, s[62:63]
    """)
    g.label("K2_z2")
    stamp(g, 1, st)
    g(f"""
    s_waitcnt vmcnt(0)
    v_lshrrev_b32 v192, 16, v{vTa}
    v_lshrrev_b32 v193, 16, v{vTb}
    v_max_u32 v194, v192, v193
    v_cmp_lt_u32 vcc, 64, v194
    s_cmp_lg_u64 vcc, 0
    s_cbranch_scc1 K2_SLOW
    v_add_u32 v192, v192, v193
    v_add_u32_dpp v192, v192, v192 row_shr:1 row_mask:0xf bank_mask:0xf bound_ctrl:0
    v_add_u32_dpp v192, v192, v192 row_shr:2 row_mask:0xf bank_mask:0xf bound_ctrl:0
    v_add_u32_dpp v192, v192, v192 row_shr:4 row_mask:0xf bank_mask:0xf bound_ctrl:0
    v_add_u32_dpp v192, v192, v192 row_shr:8 row_mask:0xf bank_mask:0xf bound_ctrl:0
    v_add_u32_dpp v192, v192, v192 row_bcast:15 row_mask:0xa bank_mask:0xf
    v_add_u32_dpp v192, v192, v192 row_bcast:31 row_mask:0xc bank_mask:0xf
    v_readlane_b32 s59, v192, 63
    s_cmp_gt_u32 s59, {FASTMAX}
    s_cbranch_scc1 K2_SLOW
    v_and_b32 v192, 15, v1
    s_lshl_b32 s59, s{sW}, 4
    v_add_u32 v192, s59, v192
    v_mul_u32_u24 v192, {C}, v192
    v_and_b32 v193, 0xffff, v{vDraw}
    v_add_u32 v192, v192, v193
    v_lshrrev_b32 v193, 16, v{vDraw}
    v_lshl_or_b32 v192, v193, 20, v192
    v_lshlrev_b32 v194, 2, v1
    """)
    for i in range(16):
        mk = sMaskSlot(i)
        g(f"""
        v_readlane_b32 s59, v192, {i}
        s_lshr_b32 s60, s59, 20
        s_and_b32 s59, s59, 0xfffff
        v_cmp_gt_u32 s[{mk}:{mk+1}], s60, v1
        s_lshl_b32 s61, s59, 4
        s_add_u32 s61, s61, {OFF_P16}
        s_lshl_b32 s59, s59, 2
        s_add_u32 s59, s59, {OFF_P4}
        buffer_load_dword v{vPay4(i)}, v194, s[{S_WS}:{S_WS+3}], s59 offen
        buffer_load_dwordx4 v[{vPay16(i)}:{vPay16(i)+3}], v195, s[{S_WS}:{S_WS+3}], s61 offen
        """)
    for t in range(4):
        g(f"v_lshlrev_b32 v{vWX(t)}, 16, v{vWX(t)}")
    stamp(g, 2, st)
    g(f"""
    s_waitcnt lgkmcnt(0)
    s_barrier
    v_mov_b32 v192, 1
    s_mov_b32 s59, {L_GCNT}
    """)
    for i in range(16):
        mk = sMaskSlot(i)
        g(f"""
        s_waitcnt vmcnt({2 * (15 - i) + 1})
        v_bfe_u32 v193, v{vPay4(i)}, 3, 3
        v_lshl_add_u32 v193, v193, 2, s59
        s_mov_b64 exec, s[{mk}:{mk+1}]
        ds_add_rtn_u32 v{vRank(i)}, v193, v192
        s_mov_b64 exec, -1
        """)
    g(f"""
    s_waitcnt lgkmcnt(0)
    s_barrier
    v_and_b32 v192, 7, v1
    v_lshlrev_b32 v192, 2, v192
    v_add_u32 v193, {L_GCNT}, v192
    ds_read_b32 v196, v193
    s_waitcnt lgkmcnt(0)
    """)
    stamp(g, 3, st)
    g("s_mov_b32 s96, 0")
    vVe, vBase = 198, 199
    for gi in range(NG):
        g(f"""
        v_readlane_b32 s97, v196, {gi}
        v_writelane_b32 v{vBase}, s96, {gi}
        s_add_u32 s98, s96, s97
        v_writelane_b32 v{vVe}, s98, {gi}
        s_add_u32 s96, s98, 31
        s_and_b32 s96, s96, 0xffffffe0
        s_lshr_b32 s{sTE(gi)}, s96, 5
        """)
    g(f"""
    s_mov_b32 s{sT}, s{sTE(NG-1)}
    v_cmp_gt_u32 vcc, 8, v1
    v_add_u32 v193, {L_GBASE}, v192
    s_mov_b64 exec, vcc
    ds_write_b32 v193, v{vBase}
    s_mov_b64 exec, -1
    v_mov_b32 v200, 0
    """)
    for gi in range(NG - 1):
        g(f"""
        v_cmp_le_u32 vcc, s{sTE(gi)}, v1
        v_addc_co_u32 v200, vcc, 0, v200, vcc
        """)
    g(f"""
    v_lshlrev_b32 v201, 2, v200
    ds_bpermute_b32 v201, v201, v{vVe}
    v_lshlrev_b32 v202, 5, v1
    s_waitcnt lgkmcnt(0)
    v_sub_u32 v201, v201, v202
    v_min_u32 v201, 32, v201
    v_lshl_or_b32 v{vTinfo}, v201, 8, v200
    ; ---- place phase
    s_mov_b32 s59, {L_GBASE}
    s_mov_b32 s60, {L_REC}
    s_mov_b32 s61, {L_META}
    """)
    for i in range(16):
        g(f"""
        v_bfe_u32 v193, v{vPay4(i)}, 3, 3
        v_lshl_add_u32 v193, v193, 2, s59
        ds_read_b32 v{vTmp(i % 8)}, v193
        """) if False else None
    for i in range(16):
        mk = sMaskSlot(i)
        g(f"""
        v_bfe_u32 v193, v{vPay4(i)}, 3, 3
        v_lshl_add_u32 v193, v193, 2, s59
        s_mov_b64 exec, s[{mk}:{mk+1}]
        ds_read_b32 v194, v193
        v_and_b32 v195, 0xffffff07, v{vPay4(i)}
        s_waitcnt vmcnt(0) lgkmcnt(0)
        v_add_u32 v194, v194, v{vRank(i)}
        v_lshl_add_u32 v192, v194, 4, s60
        ds_write_b128 v192, v[{vPay16(i)}:{vPay16(i)+3}]
        v_lshl_add_u32 v192, v194, 2, s61
        ds_write_b32 v192, v195
        s_mov_b64 exec, -1
        """)
    g(f"""
    s_cmp_ge_u32 s{sW}, {NG}
    s_cbranch_scc1 K2_nopad
    v_readlane_b32 s96, v{vVe}, s{sW}
    s_add_u32 s97, s96, 31
    s_and_b32 s97, s97, 0xffffffe0
    v_add_u32 v194, s96, v1
    v_cmp_gt_u32 vcc, s97, v194
    s_and_saveexec_b64 s[62:63], vcc
    s_cbranch_execz K2_nopad2
    v_lshl_add_u32 v192, v194, 4, s60
    ds_write_b128 v192, v[{vZero4}:{vZero4+3}]
    v_lshl_add_u32 v192, v194, 2, s61
    ds_write_b32 v192, v{vZero4}
    """)
    g.label("K2_nopad2")
    g("s_mov_b64 exec, s[62:63]")
    g.label("K2_nopad")
    g(f"""
    s_waitcnt vmcnt(0) lgkmcnt(0)
    s_barrier
    """)
    if dbg == "place":
        dump_lds(g, L_REC, CAP * 20, 32 << 20)
        g("s_branch K2_END")
    stamp(g, 4, st)
    g(f"""
    s_mul_i32 s59, s{sT}, s{sW}
    s_lshr_b32 s{sTau}, s59, 3
    s_add_u32 s59, s59, s{sT}
    s_lshr_b32 s{sTau1}, s59, 3
    s_cmp_ge_u32 s{sTau}, s{sTau1}
    s_cbranch_scc1 K2_MAINDONE
    v_readlane_b32 s59, v{vTinfo}, s{sTau}
    s_and_b32 s{sG}, s59, 0xff
    s_lshr_b32 s{sNV}, s59, 8
    """)
    for r in range(64):
        g(f"v_mov_b32 v{vSeg(0) + r}, 0")
    load_wf(g)
    prep_reads(g, sTau)
    prep_zero(g)
    g("s_waitcnt lgkmcnt(0)")
    prep_issue(g, sTau, sNV)
    if dbg == "stage":
        g("s_waitcnt vmcnt(0) lgkmcnt(0)")
        dump_lds(g, L_BST, 65536, 32 << 20)
        dump_lds(g, L_SSC, 16384, (32 << 20) + 65536)
        g("s_branch K2_END")
    g.label("K2_LOOP")
    stamp(g, 8, st)
    g(f"""
    s_add_u32 s{sTn}, s{sTau}, 1
    s_cmp_lt_u32 s{sTn}, s{sTau1}
    s_cselect_b32 s{sHas}, 1, 0
    s_min_u32 s59, s{sTn}, 63
    v_readlane_b32 s59, v{vTinfo}, s59
    s_and_b32 s{sGn}, s59, 0xff
    s_lshr_b32 s{sNVn}, s59, 8
    s_waitcnt vmcnt(0)
    """)
    for s in range(8):
        g(f"ds_read_b128 v[{vRow(s)}:{vRow(s)+3}], v{vRD(s)}")
    g(f"""
    ds_read_b128 v[{vF}:{vF+3}], v{vFaddr}
    ds_read_b128 v[{vS}:{vS+3}], v{vSrd}
    ds_read_b128 v[{vS+4}:{vS+7}], v{vSrd} offset:32
    s_cmp_eq_u32 s{sHas}, 0
    s_cbranch_scc1 K2_L1
    """)
    prep_reads(g, sTn)
    g("s_waitcnt lgkmcnt(4)")
    prep_zero(g)
    g("s_branch K2_L2")
    g.label("K2_L1")
    g("s_waitcnt lgkmcnt(0)")
    g.label("K2_L2")
    stamp(g, 9, st)
    zmfma(g, 0, vZa)
    g(f"""
    s_cmp_eq_u32 s{sHas}, 0
    s_cbranch_scc1 K2_L3
    s_waitcnt lgkmcnt(2)
    """)
    prep_issue(g, sTn, sNVn)
    g.label("K2_L3")
    stamp(g, 10, st)
    zmfma(g, 1, vZb)
    silu(g, vZa)
    segmfma(g, 0)
    stamp(g, 11, st)
    zmfma(g, 2, vZa)
    silu(g, vZb)
    segmfma(g, 1)
    zmfma(g, 3, vZb)
    silu(g, vZa)
    segmfma(g, 2)
    silu(g, vZb)
    segmfma(g, 3)
    stamp(g, 12, st)
    g(f"""
    s_cmp_eq_u32 s{sHas}, 0
    s_cbranch_scc1 K2_FL
    s_cmp_eq_u32 s{sGn}, s{sG}
    s_cbranch_scc1 K2_NEXT
    """)
    g.label("K2_FL")
    g(f"""
    s_cmp_eq_u32 s{sHas}, 0
    s_cbranch_scc1 K2_FLEND
    """)
    flush_mid(g)
    stamp(g, 13, st)
    g(f"s_mov_b32 s{sG}, s{sGn}")
    for r in range(64):
        g(f"v_mov_b32 v{vSeg(0) + r}, 0")
    load_wf(g)
    g("s_waitcnt lgkmcnt(0)")
    g.label("K2_NEXT")
    g(f"""
    s_mov_b32 s{sTau}, s{sTn}
    s_branch K2_LOOP
    """)
    g.label("K2_FLEND")
    flush_end(g)
    g(f"s_mov_b32 s{sEndG}, s{sG}")
    stamp(g, 13, st)
    g.label("K2_MAINDONE")
    stamp(g, 5, st)
    g(f"""
    v_mov_b32 v{vTmp(0)}, s{sEndG}
    s_lshl_b32 s59, s{sW}, 2
    s_add_u32 s59, s59, {L_GBASE}
    v_mov_b32 v{vTmp(1)}, s59
    ds_write_b32 v{vTmp(1)}, v{vTmp(0)}
    """)
    vWh = lambda s: 64 + 4 * s
    vHf = lambda s: 128 + 4 * s
    vHr = lambda u: 160 + 2 * u
    vMf = lambda s: 168 + 4 * s
    vAcc = 200
    g(f"""
    s_lshr_b32 s96, s{sW}, 2                        ; mt
    s_and_b32 s97, s{sW}, 3                         ; t
    v_lshlrev_b32 v4, 4, v1
    s_lshl_b32 s59, s97, 14
    s_add_u32 s59, s59, {OFF_WHF}
    """)
    for s in range(16):
        g(f"buffer_load_dwordx4 v[{vWh(s)}:{vWh(s)+3}], v4, s[{S_WS}:{S_WS+3}], s59 offen")
        if s < 15:
            g("s_add_u32 s59, s59, 1024")
    g(f"""
    s_lshl_b32 s59, s96, 5
    v_add_u32 v5, s59, v2
    v_add_u32 v6, s{sNB}, v5                        ; node
    v_lshlrev_b32 v6, 8, v6                         ; node*256
    v_lshl_add_u32 v7, v3, 4, v6
    """)
    for s in range(8):
        g(f"buffer_load_dwordx4 v[{vHf(s)}:{vHf(s)+3}], v7, s[{S_H}:{S_H+3}], 0 offen offset:{32 * s}")
    g(f"""
    v_lshl_add_u32 v7, v3, 3, v6
    s_lshl_b32 s60, s97, 6                          ; 64 t
    """)
    for u in range(4):
        g(f"buffer_load_dwordx2 v[{vHr(u)}:{vHr(u)+1}], v7, s[{S_H}:{S_H+3}], s60 offen offset:{16 * u}")
    g(f"""
    s_waitcnt lgkmcnt(0)
    s_barrier
    """)
    g(f"""
    v_lshlrev_b32 v{vTmp(0)}, 4, v0                 ; e*16
    v_mov_b32 v{vTmp(1)}, {L_GBASE}
    ds_read_b128 v[200:203], v{vTmp(1)}
    ds_read_b128 v[204:207], v{vTmp(1)} offset:16
    v_cmp_gt_u32 vcc, 264, v0
    s_and_saveexec_b64 s[62:63], vcc
    s_cbranch_execz K2_red_done
    """)
    for w in range(8):
        g(f"ds_read_b128 v[{168+4*w}:{171+4*w}], v{vTmp(0)} offset:{8192 * w}")
    g(f"""
    v_mul_u32_u24 v{vTmp(2)}, 497, v0
    v_lshrrev_b32 v{vTmp(2)}, 14, v{vTmp(2)}        ; row = e / 33
    s_waitcnt lgkmcnt(0)
    s_mov_b64 s[12:13], exec
    """)
    for w in range(8):
        lab = g.newlabel("K2_red")
        g(f"""
        v_readfirstlane_b32 s100, v{200+w}
        s_cmp_ge_u32 s100, {NG}
        s_cbranch_scc1 {lab}
        s_lshl_b32 s101, s100, 3
        v_add_u32 v{vTmp(3)}, s101, v{vTmp(2)}
        v_cmp_gt_u32 vcc, {BN}, v{vTmp(3)}
        s_and_b64 exec, s[12:13], vcc
        s_cbranch_execz {lab}
        s_mul_i32 s101, s100, {8 * MROW}
        s_add_u32 s101, s101, {L_MACC}
        v_add_u32 v{vTmp(3)}, s101, v{vTmp(0)}
        ds_read_b128 v[208:211], v{vTmp(3)}
        s_waitcnt lgkmcnt(0)
        v_add_f32 v208, v208, v{168+4*w}
        v_add_f32 v209, v209, v{169+4*w}
        v_add_f32 v210, v210, v{170+4*w}
        v_add_f32 v211, v211, v{171+4*w}
        ds_write_b128 v{vTmp(3)}, v[208:211]
        s_waitcnt lgkmcnt(0)
        """)
        g.label(lab)
        g("s_mov_b64 exec, s[12:13]")
    g.label("K2_red_done")
    g(f"""
    s_mov_b64 exec, s[62:63]
    s_waitcnt lgkmcnt(0)
    s_barrier
    v_mul_u32_u24 v8, {MROW}, v5
    v_lshl_add_u32 v8, v3, 5, v8
    v_add_u32 v8, {L_MACC}, v8
    s_mov_b32 s61, 0x{NLN2:08x}
    """)
    stamp(g, 6, st)
    if dbg == "macc":
        dump_lds(g, L_MACC, BN * MROW, 32 << 20)
        g("s_branch K2_END")
    for s in range(8):
        g(f"""
        ds_read_b128 v[{vTmp(0)}:{vTmp(3)}], v8 offset:{64 * s}
        ds_read_b128 v[{vTmp(4)}:{vTmp(7)}], v8 offset:{64 * s + 16}
        s_waitcnt lgkmcnt(0)
        """)
        for k in range(8):
            g(f"v_mul_f32 v{vTmp(k)}, s61, v{vTmp(k)}")
        for d in range(4):
            g(f"v_cvt_pk_bf16_f32 v{vMf(s)+d}, v{vTmp(2*d)}, v{vTmp(2*d+1)}")
    g("s_waitcnt vmcnt(0)")
    for s in range(8):
        mfma(g, vAcc, vWh(s), vHf(s), vAcc if s else None)
    for s in range(8):
        mfma(g, vAcc, vWh(8 + s), vMf(s), vAcc)
    g(f"s_mov_b32 s62, 0x{C1:08x}")
    for u in range(4):
        a = vAcc + 4 * u
        g(f"""
        v_cvt_pk_bf16_f32 v216, v{a}, v{a+1}
        v_cvt_pk_bf16_f32 v217, v{a+2}, v{a+3}
        v_lshlrev_b32 v{a}, 16, v216
        v_and_b32 v{a+1}, 0xffff0000, v216
        v_lshlrev_b32 v{a+2}, 16, v217
        v_and_b32 v{a+3}, 0xffff0000, v217
        """)
        for k in range(4):
            g(f"v_mul_f32 v{218+k}, s62, v{a+k}")
        for k in range(4):
            g(f"v_exp_f32 v{218+k}, v{218+k}")
        for k in range(4):
            g(f"v_add_f32 v{218+k}, 1.0, v{218+k}")
        for k in range(4):
            g(f"v_rcp_f32 v{218+k}, v{218+k}")
        for k in range(4):
            g(f"v_mul_f32 v{218+k}, v{a+k}, v{218+k}")
        g(f"""
        v_cvt_pk_bf16_f32 v216, v218, v219
        v_cvt_pk_bf16_f32 v217, v220, v221
        v_lshlrev_b32 v218, 16, v216
        v_and_b32 v219, 0xffff0000, v216
        v_lshlrev_b32 v220, 16, v217
        v_and_b32 v221, 0xffff0000, v217
        v_lshlrev_b32 v222, 16, v{vHr(u)}
        v_and_b32 v223, 0xffff0000, v{vHr(u)}
        v_lshlrev_b32 v224, 16, v{vHr(u)+1}
        v_and_b32 v225, 0xffff0000, v{vHr(u)+1}
        v_add_f32 v218, v218, v222
        v_add_f32 v219, v219, v223
        v_add_f32 v220, v220, v224
        v_add_f32 v221, v221, v225
        v_cvt_pk_bf16_f32 v{226+2*u}, v218, v219
        v_cvt_pk_bf16_f32 v{227+2*u}, v220, v221
        """)
    g(f"""
    v_cmp_gt_u32 vcc, {BN}, v5
    s_and_saveexec_b64 s[62:63], vcc
    s_cbranch_execz K2_nost
    """)
    for u in range(4):
        g(f"buffer_store_dwordx2 v[{226+2*u}:{227+2*u}], v7, s[{S_OUT}:{S_OUT+3}], s60 offen offset:{16 * u}")
    g.label("K2_nost")
    g("s_mov_b64 exec, s[62:63]")
    g(f"""
    s_cmp_lg_u32 s{sW}, 7
    s_cbranch_scc1 K2_END
    v_cmp_gt_u32 vcc, {BN}, v1
    s_and_saveexec_b64 s[62:63], vcc
    v_mul_u32_u24 v4, {MROW}, v1
    v_add_u32 v4, {L_MACC + 512}, v4
    ds_read_b128 v[{vTmp(0)}:{vTmp(3)}], v4
    v_add_u32 v5, s{sNB}, v1
    v_mul_u32_u24 v5, 6, v5
    buffer_load_ushort v{vTmp(4)}, v5, s[{S_POS}:{S_POS+3}], 0 offen
    buffer_load_ushort v{vTmp(5)}, v5, s[{S_POS}:{S_POS+3}], 0 offen offset:2
    buffer_load_ushort v{vTmp(6)}, v5, s[{S_POS}:{S_POS+3}], 0 offen offset:4
    s_mov_b32 s60, 3200000
    s_waitcnt vmcnt(0) lgkmcnt(0)
    """)
    for x in range(3):
        g(f"""
        v_lshlrev_b32 v{vTmp(4+x)}, 16, v{vTmp(4+x)}
        v_fmac_f32 v{vTmp(4+x)}, s61, v{vTmp(x)}
        v_cvt_pk_bf16_f32 v{vTmp(4+x)}, v{vTmp(4+x)}, v{vTmp(4+x)}
        buffer_store_short v{vTmp(4+x)}, v5, s[{S_OUT}:{S_OUT+3}], s60 offen offset:{2 * x}
        """)
    g("s_mov_b64 exec, s[62:63]")
    g("s_branch K2_END")
    g.label("K2_SLOW")
    g("s_branch K2_END")
    g.label("K2_END")
    if st:
        stamp(g, 7, st)
        g(f"""
        s_mov_b64 exec, -1
        s_cmp_ge_u32 s2, {NB}
        s_cbranch_scc1 K2_END2
        v_lshlrev_b32 v4, 2, v1
        s_lshl_b32 s59, s2, 3
        s_add_u32 s59, s59, s{sW}
        s_lshl_b32 s59, s59, 8
        s_add_u32 s59, s59, {48 << 20}
        buffer_store_dword v255, v4, s[{S_WS}:{S_WS+3}], s59 offen
        """)
        g.label("K2_END2")
    g("s_endpgm")


def dump_lds(g, lds_off, nbytes, ws_off):
    lab = g.newlabel("dump")
    g(f"""
    s_barrier
    s_lshl_b32 s59, s2, 18
    s_add_u32 s59, s59, {ws_off}
    v_lshlrev_b32 v4, 2, v0
    v_add_u32 v5, {lds_off}, v4
    s_mov_b32 s60, 0
    """)
    g.label(lab)
    g(f"""
    v_add_u32 v6, s60, v5
    v_add_u32 v7, s60, v4
    ds_read_b32 v8, v6
    s_waitcnt lgkmcnt(0)
    buffer_store_dword v8, v7, s[{S_WS}:{S_WS+3}], s59 offen
    s_add_u32 s60, s60, 2048
    s_cmp_lt_u32 s60, {nbytes}
    s_cbranch_scc1 {lab}
    """)


if __name__ == "__main__":
    dbg = sys.argv[2] if len(sys.argv) > 2 else None
    out = sys.argv[1] if len(sys.argv) > 1 else "k.s"
    open(out, "w").write(build(lambda g: k2(g, dbg), k2_lds=163840))
    print("wrote", out)
```

```python
import re

TRANS = ("v_exp_f32", "v_log_f32", "v_rcp_f32", "v_rsq_f32", "v_sqrt_f32", "v_sin_f32", "v_cos_f32")


def _regs(tok):
    tok = tok.strip()
    m = re.fullmatch(r"([vsa])(\d+)", tok)
    if m:
        return m.group(1), [int(m.group(2))]
    m = re.fullmatch(r"([vsa])\[(\d+):(\d+)\]", tok)
    if m:
        return m.group(1), list(range(int(m.group(2)), int(m.group(3)) + 1))
    if tok in ("vcc", "exec", "m0", "scc"):
        return tok, [0]
    return None, []


class Ins:
    __slots__ = ("text", "op", "wr", "rd", "kind", "mfma_c", "mfma_d", "passes", "is_label", "nop", "dpp", "lanesel",
                 "store_data", "ldsdma")

    def __init__(self, text):
        self.text = text
        self.is_label = False
        self.nop = 0
        self.wr = set()
        self.rd = set()
        self.kind = "other"
        self.mfma_c = set()
        self.mfma_d = set()
        self.passes = 0
        self.dpp = False
        self.lanesel = set()
        self.store_data = set()
        self.ldsdma = False
        t = text.split(";")[0].strip()
        if not t or t.startswith("."):
            self.op = ""
            self.kind = "none"
            return
        if t.endswith(":"):
            self.op = ""
            self.kind = "label"
            self.is_label = True
            return
        parts = t.split(None, 1)
        self.op = parts[0]
        rest = parts[1] if len(parts) > 1 else ""
        ops = [o.strip() for o in rest.split(",")] if rest else []
        mods = ""
        if ops:
            last = ops[-1].split()
            ops[-1] = last[0] if last else ""
            mods = " ".join(last[1:])
        self.parse(ops, mods)

    def _add(self, s, tok):
        c, idx = _regs(tok)
        if c is None:
            return
        for i in idx:
            s.add((c, i))

    def parse(self, ops, mods):
        op = self.op
        if op == "s_nop":
            self.kind = "nop"
            self.nop = int(ops[0], 0) + 1
            return
        if op.startswith("s_"):
            if op.startswith("s_cbranch") or op in ("s_branch", "s_setpc_b64", "s_swappc_b64", "s_endpgm"):
                self.kind = "branch"
                if "exec" in op:
                    self.rd.add(("exec", 0))
                if "vcc" in op:
                    self.rd.add(("vcc", 0))
                return
            if op in ("s_waitcnt", "s_barrier", "s_setprio", "s_sleep"):
                self.kind = "misc"
                return
            if op.startswith("s_load") or op.startswith("s_buffer_load") or op in ("s_memtime", "s_memrealtime"):
                self.kind = "smem"
                self._add(self.wr, ops[0])
                for o in ops[1:]:
                    self._add(self.rd, o)
                return
            self.kind = "salu"
            if op.startswith("s_cmp") or op.startswith("s_bitcmp"):
                for o in ops:
                    self._add(self.rd, o)
                return
            self._add(self.wr, ops[0])
            for o in ops[1:]:
                self._add(self.rd, o)
            if "saveexec" in op:
                self.wr.add(("exec", 0))
                self.rd.add(("exec", 0))
            return
        if op.startswith("v_mfma"):
            self.kind = "mfma"
            self.passes = 8 if "32x32" in op else 4
            self._add(self.wr, ops[0])
            self._add(self.mfma_d, ops[0])
            self._add(self.rd, ops[1])
            self._add(self.rd, ops[2])
            self._add(self.rd, ops[3])
            self._add(self.mfma_c, ops[3])
            return
        if op.startswith("v_"):
            self.kind = "trans" if op.replace("_e32", "").replace("_e64", "") in TRANS else "valu"
            if "dpp" in op or "row_" in mods or "quad_perm" in mods or "wave_" in mods:
                self.dpp = True
            if op.startswith("v_cmp"):
                self._add(self.wr, ops[0])
                for o in ops[1:]:
                    self._add(self.rd, o)
                return
            if op in ("v_readlane_b32", "v_readfirstlane_b32"):
                self.kind = "readlane"
                self._add(self.wr, ops[0])
                self._add(self.rd, ops[1])
                if len(ops) > 2:
                    self._add(self.lanesel, ops[2])
                return
            if op == "v_writelane_b32":
                self._add(self.wr, ops[0])
                self._add(self.rd, ops[0])
                self._add(self.rd, ops[1])
                self._add(self.lanesel, ops[2])
                return
            if op.startswith("v_permlane"):
                self.kind = "permlane"
                for o in ops[:2]:
                    self._add(self.wr, o)
                    self._add(self.rd, o)
                return
            self._add(self.wr, ops[0])
            k = 1
            if "_co_" in op:
                self._add(self.wr, ops[1])
                k = 2
            for o in ops[k:]:
                self._add(self.rd, o)
            if op.startswith("v_fmac") or op.startswith("v_pk_fmac") or op.startswith("v_dot2c"):
                self._add(self.rd, ops[0])
            if op.startswith("v_cndmask") and len(ops) == 3:
                self.rd.add(("vcc", 0))
            return
        if op.startswith("ds_"):
            self.kind = "ds"
            if op.startswith("ds_read") or op.startswith("ds_bpermute") or op.startswith("ds_permute") or op.startswith("ds_swizzle"):
                self._add(self.wr, ops[0])
                for o in ops[1:]:
                    self._add(self.rd, o)
            elif "_rtn" in op:
                self._add(self.wr, ops[0])
                for o in ops[1:]:
                    self._add(self.rd, o)
            else:
                for o in ops:
                    self._add(self.rd, o)
            return
        if op.startswith("buffer_") or op.startswith("global_"):
            self.kind = "vmem"
            is_lds = " lds" in (" " + mods) or "_lds_" in op
            if is_lds:
                self.ldsdma = True
                self.rd.add(("m0", 0))
                for o in ops:
                    self._add(self.rd, o)
            elif "_load" in op:
                self._add(self.wr, ops[0])
                for o in ops[1:]:
                    self._add(self.rd, o)
            elif "_store" in op:
                if op.startswith("global_"):
                    self._add(self.store_data, ops[1])
                else:
                    self._add(self.store_data, ops[0])
                for o in ops:
                    self._add(self.rd, o)
            else:
                for o in ops:
                    self._add(self.rd, o)
                if "sc0" in mods:
                    self._add(self.wr, ops[0])
            return
        raise ValueError("unknown instruction: " + self.text)


class Gen:
    def __init__(self):
        self.lines = []
        self._lab = 0

    def __call__(self, text):
        for l in text.split("\n"):
            l = l.strip()
            if l:
                self.lines.append(l)

    def raw(self, text):
        self.lines.append(text)

    def label(self, name):
        self.lines.append(name + ":")

    def newlabel(self, stem="L"):
        self._lab += 1
        return f"{stem}_{self._lab}"

    def finalize(self):
        out = []
        ins_list = [Ins(l) for l in self.lines]
        pos = 0
        valu_sgpr = {}
        valu_vgpr = {}
        trans_vgpr = {}
        salu_m0 = None
        mfma_d = {}
        mfma_c = {}
        store_d = {}

        def need(ins):
            req = pos
            def upd(p, w):
                nonlocal req
                if p is not None and p + w + 1 > req:
                    req = p + w + 1
            is_valu = ins.kind in ("valu", "trans", "readlane", "permlane")
            if is_valu or ins.kind == "mfma":
                for r in ins.rd:
                    if r[0] in ("s", "vcc"):
                        upd(valu_sgpr.get(r), 2)
                for r in ins.lanesel:
                    upd(valu_sgpr.get(r), 4)
            if ins.kind == "vmem":
                for r in ins.rd:
                    if r[0] in ("s", "vcc"):
                        upd(valu_sgpr.get(r), 5)
            if ins.kind in ("salu", "branch", "smem"):
                for r in ins.rd:
                    if r[0] in ("s", "vcc"):
                        upd(valu_sgpr.get(r), 2)
            if ins.kind == "readlane":
                for r in ins.rd:
                    upd(valu_vgpr.get(r), 1)
            if is_valu and ins.kind != "trans" or ins.kind in ("vmem", "ds"):
                for r in ins.rd:
                    upd(trans_vgpr.get(r), 1)
            if ins.dpp or ins.kind == "permlane":
                for r in ins.rd:
                    upd(valu_vgpr.get(r), 2)
            if ins.ldsdma and salu_m0 is not None:
                upd(salu_m0, 1)
            if ins.kind == "mfma":
                for r in ins.rd:
                    upd(valu_vgpr.get(r), 2)
            if ins.kind == "mfma":
                cset = frozenset(ins.mfma_c)
                for r in ins.rd:
                    if r in mfma_d:
                        p, ps, dset = mfma_d[r]
                        if r in ins.mfma_c:
                            if cset == dset:
                                w = 0
                            else:
                                w = {4: 6, 8: 10}[ps]
                        else:
                            w = {4: 8, 8: 12}[ps]
                        upd(p, w)
                for r in ins.wr:
                    if r in mfma_d and r not in ins.mfma_c:
                        p, ps, dset = mfma_d[r]
                        upd(p, {4: 8, 8: 12}[ps])
            elif ins.kind in ("valu", "trans", "readlane", "permlane", "vmem", "ds"):
                for r in (ins.rd | ins.wr):
                    if r in mfma_d:
                        p, ps, dset = mfma_d[r]
                        upd(p, {4: 8, 8: 12}[ps])
            if is_valu:
                for r in ins.wr:
                    if r in mfma_c:
                        p, ps = mfma_c[r]
                        upd(p, {4: 3, 8: 7}[ps])
            if ins.kind != "none":
                for r in ins.wr:
                    if r in store_d:
                        upd(store_d[r], 2 if is_valu else 1)
            return req

        label_idx = {}
        for idx_, ins_ in enumerate(ins_list):
            if ins_.kind == "label":
                label_idx[ins_.text.strip()[:-1]] = idx_
        pending = {}
        dicts = {"vs": valu_sgpr, "vv": valu_vgpr, "tv": trans_vgpr, "sd": store_d}

        for cur_idx, ins in enumerate(ins_list):
            if ins.kind in ("none",):
                out.append(ins.text)
                continue
            if ins.kind == "label":
                out.append(ins.text)
                name = ins.text.strip()[:-1]
                for snap in pending.pop(name, []):
                    for k_, d_ in dicts.items():
                        for r_, age in snap[k_].items():
                            p_ = pos - age
                            if d_.get(r_, -10**9) < p_:
                                d_[r_] = p_
                    for r_, (age, ps_, ds_) in snap["md"].items():
                        p_ = pos - age
                        if r_ not in mfma_d or mfma_d[r_][0] < p_:
                            mfma_d[r_] = (p_, ps_, ds_)
                    for r_, (age, ps_) in snap["mc"].items():
                        p_ = pos - age
                        if r_ not in mfma_c or mfma_c[r_][0] < p_:
                            mfma_c[r_] = (p_, ps_)
                    if snap["m0"] is not None:
                        p_ = pos - snap["m0"]
                        if salu_m0 is None or salu_m0 < p_:
                            salu_m0 = p_
                continue
            if ins.kind == "nop":
                out.append("  " + ins.text)
                pos += ins.nop
                continue
            req = need(ins)
            is_fwd = False
            if ins.kind == "branch" and ins.op not in ("s_endpgm", "s_setpc_b64", "s_swappc_b64"):
                tgt = ins.text.split(";")[0].split()[-1]
                is_fwd = label_idx.get(tgt, -1) > cur_idx
            if ins.kind == "branch" and ins.op != "s_endpgm" and not is_fwd:
                for d, w in ((valu_sgpr, 5), (valu_vgpr, 2), (trans_vgpr, 1), (store_d, 2)):
                    for p in d.values():
                        req = max(req, p + w)
                for (p, ps, _) in mfma_d.values():
                    req = max(req, p + {4: 8, 8: 12}[ps])
                if salu_m0 is not None:
                    req = max(req, salu_m0 + 1)
            while req > pos:
                k = min(req - pos, 16)
                out.append(f"  s_nop {k - 1}")
                pos += k
            out.append("  " + ins.text)
            if is_fwd:
                nx = pos + 1
                snap = {k_: {r_: nx - p_ for r_, p_ in d_.items() if nx - p_ < 24} for k_, d_ in dicts.items()}
                snap["md"] = {r_: (nx - v_[0], v_[1], v_[2]) for r_, v_ in mfma_d.items() if nx - v_[0] < 24}
                snap["mc"] = {r_: (nx - v_[0], v_[1]) for r_, v_ in mfma_c.items() if nx - v_[0] < 24}
                snap["m0"] = None if salu_m0 is None else nx - salu_m0
                pending.setdefault(tgt, []).append(snap)
            if ins.kind in ("valu", "trans", "readlane", "permlane"):
                for r in ins.wr:
                    if r[0] in ("s", "vcc"):
                        valu_sgpr[r] = pos
                    elif r[0] in ("v", "a"):
                        valu_vgpr[r] = pos
                        if ins.kind == "trans":
                            trans_vgpr[r] = pos
                        else:
                            trans_vgpr.pop(r, None)
            else:
                for r in ins.wr:
                    valu_sgpr.pop(r, None)
                    valu_vgpr.pop(r, None)
                    trans_vgpr.pop(r, None)
            if ins.kind == "salu" and ("m0", 0) in ins.wr:
                salu_m0 = pos
            if ins.kind == "mfma":
                ds = frozenset(ins.mfma_d)
                for r in ins.mfma_d:
                    mfma_d[r] = (pos, ins.passes, ds)
                for r in ins.mfma_c:
                    mfma_c[r] = (pos, ins.passes)
            else:
                for r in ins.wr:
                    mfma_d.pop(r, None)
            if ins.store_data and len(ins.store_data) >= 3:
                for r in ins.store_data:
                    store_d[r] = pos
            pos += 1
        return "\n".join(out) + "\n"
```

```python
import sys
from asmlib import Gen

N, E, D = 12500, 400000, 128
NB, BN = 250, 50
P, C = 128, 3125
NG = 7

OFF_B = 0
OFF_AT = OFF_B + N * 256
OFF_P16 = OFF_AT + NB * NG * 2048
OFF_P4 = OFF_P16 + E * 16
OFF_TAB = OFF_P4 + E * 4
OFF_WHF = OFF_TAB + NB * P * 4
OFF_WF5 = OFF_WHF + 65536
WS_END = OFF_WF5 + 2048
WS_BYTES = 268435456

C1 = 0xBFB8AA3B
NLN2 = 0xBF317218

K1 = "egnn_prep_kernel"
K2 = "standalone__cheap_equivariant_egnn__graph_kernel"


def srd(g, s, lo, nbytes):
    g(f"""
    s_mov_b32 s{s}, s{lo}
    s_mov_b32 s{s+1}, s{lo+1}
    s_mov_b32 s{s+2}, {nbytes}
    s_mov_b32 s{s+3}, 0x00020000
    """)


import os
RT = os.environ.get("RTSTAMP") == "1"
def k1(g):
    S_H, S_POS, S_EA, S_SRC, S_DST, S_WE, S_WH, S_WS = 20, 24, 28, 32, 36, 40, 44, 48
    g.label(K1)
    if RT: g("s_memrealtime s[90:91]")
    g(f"""
    s_cmp_ge_u32 s2, 254
    s_cbranch_scc1 K1_END
    s_load_dwordx2 s[4:5], s[0:1], 0
    s_load_dwordx2 s[6:7], s[0:1], 8
    s_load_dwordx2 s[8:9], s[0:1], 16
    s_load_dwordx2 s[10:11], s[0:1], 24
    s_load_dwordx2 s[12:13], s[0:1], 32
    s_load_dwordx2 s[14:15], s[0:1], 40
    s_load_dwordx2 s[16:17], s[0:1], 56
    s_load_dwordx2 s[18:19], s[0:1], 80
    v_and_b32 v1, 63, v0              ; lane
    v_lshrrev_b32 v2, 6, v0           ; wave
    v_readfirstlane_b32 s60, v2
    s_waitcnt lgkmcnt(0)
    """)
    srd(g, S_H, 4, N * 256)
    srd(g, S_POS, 6, N * 6)
    srd(g, S_EA, 8, E * 8)
    srd(g, S_SRC, 10, E * 4)
    srd(g, S_DST, 12, E * 4)
    srd(g, S_WE, 14, 261 * 256)
    srd(g, S_WH, 16, 256 * 256)
    srd(g, S_WS, 18, WS_BYTES)
    g("""
    s_cmp_lt_u32 s2, 128
    s_cbranch_scc1 K1_PART
    s_cmp_lt_u32 s2, 253
    s_cbranch_scc1 K1_GEMM
    s_branch K1_WPREP
    """)

    R = 7
    vD = lambda r: 8 + r
    vS = lambda r: 16 + r
    vEA = lambda r: 24 + 2 * r
    vB = lambda r: 40 + r
    vL = lambda r: 48 + r
    vRk = lambda r: 56 + r
    vPD = lambda r: 64 + 2 * r
    vPS = lambda r: 80 + 2 * r
    g.label("K1_PART")
    g(f"""
    s_mul_i32 s61, s2, {C}            ; e0
    v_lshlrev_b32 v3, 2, v0           ; tid*4
    v_lshlrev_b32 v4, 3, v0           ; tid*8
    v_mov_b32 v5, 0
    v_cmp_gt_u32 vcc, 256, v0
    s_and_saveexec_b64 s[62:63], vcc
    ds_write_b32 v3, v5
    s_mov_b64 exec, s[62:63]
    v_cmp_gt_u32 s[64:65], {C - 6 * 512}, v0
    s_lshl_b32 s66, s61, 2            ; e0*4
    s_lshl_b32 s67, s61, 3            ; e0*8
    """)
    for r in range(R):
        g(f"s_add_u32 s68, s66, {r * 2048}")
        g(f"buffer_load_dword v{vD(r)}, v3, s[{S_DST}:{S_DST+3}], s68 offen")
    for r in range(R):
        g(f"s_add_u32 s68, s66, {r * 2048}")
        g(f"buffer_load_dword v{vS(r)}, v3, s[{S_SRC}:{S_SRC+3}], s68 offen")
    for r in range(R):
        g(f"s_add_u32 s68, s67, {r * 4096}")
        g(f"buffer_load_dwordx2 v[{vEA(r)}:{vEA(r)+1}], v4, s[{S_EA}:{S_EA+3}], s68 offen")
    g("""
    s_waitcnt lgkmcnt(0)
    s_barrier
    s_waitcnt vmcnt(14)
    v_mov_b32 v6, 1
    """)
    for r in range(R):
        g(f"""
        v_mul_u32_u24 v7, 5243, v{vD(r)}
        v_lshrrev_b32 v{vB(r)}, 18, v7
        v_mul_u32_u24 v7, 50, v{vB(r)}
        v_sub_u32 v{vL(r)}, v{vD(r)}, v7
        v_lshlrev_b32 v7, 2, v{vB(r)}
        """)
        if r == R - 1:
            lab = g.newlabel("K1_skipA")
            g(f"""
            s_mov_b64 s[62:63], exec
            s_and_b64 exec, exec, s[64:65]
            s_cbranch_execz {lab}
            ds_add_rtn_u32 v{vRk(r)}, v7, v6
            """)
            g.label(lab)
            g("s_mov_b64 exec, s[62:63]")
        else:
            g(f"ds_add_rtn_u32 v{vRk(r)}, v7, v6")
    for r in range(R):
        g(f"""
        v_mul_u32_u24 v7, 6, v{vD(r)}
        v_and_b32 v7, 0xfffffffc, v7
        buffer_load_dwordx2 v[{vPD(r)}:{vPD(r)+1}], v7, s[{S_POS}:{S_POS+3}], 0 offen
        """)
    g("s_waitcnt vmcnt(14)")
    for r in range(R):
        g(f"""
        v_mul_u32_u24 v7, 6, v{vS(r)}
        v_and_b32 v7, 0xfffffffc, v7
        buffer_load_dwordx2 v[{vPS(r)}:{vPS(r)+1}], v7, s[{S_POS}:{S_POS+3}], 0 offen
        """)
    g("""
    s_waitcnt lgkmcnt(0)
    s_barrier
    s_cmp_lg_u32 s60, 0
    s_cbranch_scc1 K1_SCANDONE
    """)
    g("""
    v_lshlrev_b32 v100, 4, v1
    ds_read_b128 v[104:107], v100
    s_waitcnt lgkmcnt(0)
    v_add_u32 v108, v104, v105        ; c0+c1
    v_add_u32 v109, v108, v106        ; +c2
    v_add_u32 v110, v109, v107
    v_mov_b32 v111, v110
    v_add_u32_dpp v111, v111, v111 row_shr:1 row_mask:0xf bank_mask:0xf bound_ctrl:0
    v_add_u32_dpp v111, v111, v111 row_shr:2 row_mask:0xf bank_mask:0xf bound_ctrl:0
    v_add_u32_dpp v111, v111, v111 row_shr:4 row_mask:0xf bank_mask:0xf bound_ctrl:0
    v_add_u32_dpp v111, v111, v111 row_shr:8 row_mask:0xf bank_mask:0xf bound_ctrl:0
    v_add_u32_dpp v111, v111, v111 row_bcast:15 row_mask:0xa bank_mask:0xf
    v_add_u32_dpp v111, v111, v111 row_bcast:31 row_mask:0xc bank_mask:0xf
    v_sub_u32 v112, v111, v110        ; exclusive
    v_add_u32 v113, v112, v104
    v_add_u32 v114, v112, v108
    v_add_u32 v115, v112, v109
    ds_write_b128 v100, v[112:115] offset:1024
    s_waitcnt lgkmcnt(0)
    """)
    g.label("K1_SCANDONE")
    g("s_barrier")
    g(f"""
    v_cmp_gt_u32 vcc, {NB}, v0
    s_and_saveexec_b64 s[62:63], vcc
    s_cbranch_execz K1_NOTAB
    ds_read_b32 v100, v3
    ds_read_b32 v101, v3 offset:1024
    v_lshlrev_b32 v102, 9, v0         ; tid*512
    s_lshl_b32 s68, s2, 2
    s_add_u32 s68, s68, {OFF_TAB}
    s_waitcnt lgkmcnt(0)
    v_lshl_or_b32 v100, v100, 16, v101
    buffer_store_dword v100, v102, s[{S_WS}:{S_WS+3}], s68 offen
    """)
    g.label("K1_NOTAB")
    g("s_mov_b64 exec, s[62:63]")
    for r in range(R):
        g(f"""
        v_lshlrev_b32 v7, 2, v{vB(r)}
        ds_read_b32 v{vB(r)}, v7 offset:1024
        """)
    g(f"""
    s_lshl_b32 s68, s61, 4
    s_add_u32 s68, s68, {OFF_P16}
    s_add_u32 s69, s66, {OFF_P4}
    s_waitcnt vmcnt(0) lgkmcnt(0)
    """)
    for r in range(R):
        pd, ps = vPD(r), vPS(r)
        if r == R - 1:
            lab = g.newlabel("K1_skipB")
            g(f"""
            s_mov_b64 s[62:63], exec
            s_and_b64 exec, exec, s[64:65]
            s_cbranch_execz {lab}
            """)
        g(f"""
        v_add_u32 v{vRk(r)}, v{vB(r)}, v{vRk(r)}
        v_and_b32 v7, 1, v{vD(r)}
        v_lshlrev_b32 v7, 4, v7
        v_lshrrev_b64 v[{pd}:{pd+1}], v7, v[{pd}:{pd+1}]
        v_and_b32 v7, 1, v{vS(r)}
        v_lshlrev_b32 v7, 4, v7
        v_lshrrev_b64 v[{ps}:{ps+1}], v7, v[{ps}:{ps+1}]
        v_lshlrev_b32 v100, 16, v{pd}                  ; xd
        v_and_b32 v101, 0xffff0000, v{pd}              ; yd
        v_lshlrev_b32 v102, 16, v{pd+1}                ; zd
        v_lshlrev_b32 v103, 16, v{ps}
        v_and_b32 v104, 0xffff0000, v{ps}
        v_lshlrev_b32 v105, 16, v{ps+1}
        v_sub_f32 v100, v100, v103                     ; dx
        v_sub_f32 v101, v101, v104                     ; dy
        v_sub_f32 v102, v102, v105                     ; dz
        v_cvt_pk_bf16_f32 v111, v101, v102
        v_cvt_pk_bf16_f32 v103, v100, v100
        v_lshlrev_b32 v100, 16, v103                   ; dxr
        v_lshlrev_b32 v101, 16, v111                   ; dyr
        v_and_b32 v102, 0xffff0000, v111               ; dzr
        v_mul_f32 v103, v100, v100
        v_mul_f32 v104, v101, v101
        v_mul_f32 v105, v102, v102
        v_cvt_pk_bf16_f32 v103, v103, v104
        v_cvt_pk_bf16_f32 v105, v105, v105             ; sz
        v_lshlrev_b32 v104, 16, v103
        v_and_b32 v103, 0xffff0000, v103
        v_lshlrev_b32 v105, 16, v105
        v_add_f32 v103, v104, v103
        v_add_f32 v103, v103, v105                     ; d2 (f32)
        v_cvt_pk_bf16_f32 v110, v103, v100             ; w2 = d2 | dx<<16
        v_mov_b32 v108, v{vEA(r)}
        v_mov_b32 v109, v{vEA(r)+1}
        v_lshlrev_b32 v7, 4, v{vRk(r)}
        buffer_store_dwordx4 v[108:111], v7, s[{S_WS}:{S_WS+3}], s68 offen
        v_lshl_or_b32 v106, v{vS(r)}, 8, v{vL(r)}
        v_lshlrev_b32 v7, 2, v{vRk(r)}
        buffer_store_dword v106, v7, s[{S_WS}:{S_WS+3}], s69 offen
        """)
        if r == R - 1:
            g.label(lab)
            g("s_mov_b64 exec, s[62:63]")
    g("s_branch K1_END")

    vWF = lambda s, d: 8 + 4 * s + d
    vHF = lambda rt, s: 40 + 32 * rt + 4 * s
    vAC = lambda rt: 168 + 16 * rt
    g.label("K1_GEMM")
    g(f"""
    s_sub_u32 s61, s2, 128            ; q
    s_lshr_b32 s62, s60, 2            ; part
    s_and_b32 s63, s60, 3             ; t
    v_and_b32 v2, 31, v1              ; n / m
    v_lshrrev_b32 v3, 5, v1
    v_lshlrev_b32 v4, 11, v3
    v_lshlrev_b32 v5, 1, v2
    v_add_u32 v4, v4, v5
    s_lshl_b32 s64, s63, 6            ; 32t*2
    v_add_u32 v4, s64, v4
    s_lshl_b32 s65, s62, 15           ; part*128*256
    """)
    for s in range(8):
        g(f"s_add_u32 s66, s65, {s * 4096}")
        for j in range(8):
            g(f"buffer_load_ushort v{vAC(0) + 8 * s + j}, v4, s[{S_WE}:{S_WE+3}], s66 offen offset:{j * 256}")
    g("s_mul_i32 s67, s61, 100")
    for rt in range(4):
        row0 = 50 * (rt >> 1) + 32 * (rt & 1)
        g(f"""
        v_add_u32 v5, {row0}, v2
        v_add_u32 v5, s67, v5
        v_lshlrev_b32 v{232 + rt}, 8, v5            ; row*256
        v_lshlrev_b32 v6, 4, v3
        v_add_u32 v6, v{232 + rt}, v6
        """)
        for s in range(8):
            g(f"buffer_load_dwordx4 v[{vHF(rt, s)}:{vHF(rt, s)+3}], v6, s[{S_H}:{S_H+3}], 0 offen offset:{32 * s}")
    g("s_waitcnt vmcnt(32)")
    for s in range(8):
        for d in range(4):
            g(f"v_lshl_or_b32 v{vWF(s, d)}, v{vAC(0) + 8 * s + 2 * d + 1}, 16, v{vAC(0) + 8 * s + 2 * d}")
    g(f"""
    s_mov_b32 s70, 0x{C1:08x}
    s_waitcnt vmcnt(0)
    s_cmp_lg_u32 s62, 0
    s_cbranch_scc1 K1_GEMM_B
    """)
    for rt in range(4):
        for s in range(8):
            c = f"v[{vAC(rt)}:{vAC(rt)+15}]" if s else "0"
            g(f"v_mfma_f32_32x32x16_bf16 v[{vAC(rt)}:{vAC(rt)+15}], v[{vHF(rt, s)}:{vHF(rt, s)+3}], v[{vWF(s, 0)}:{vWF(s, 0)+3}], {c}")
    g(f"""
    v_lshlrev_b32 v4, 4, v2
    v_lshlrev_b32 v5, 3, v3
    v_add_u32 v4, v4, v5
    s_lshl_b32 s64, s63, 9            ; 32t*16
    v_add_u32 v4, s64, v4
    """)
    for rt in range(4):
        for u in range(4):
            grp = 4 * (rt & 1) + u
            if grp >= NG:
                continue
            a = vAC(rt) + 4 * u
            g(f"""
            v_mul_f32 v{a}, s70, v{a}
            v_mul_f32 v{a+1}, s70, v{a+1}
            v_mul_f32 v{a+2}, s70, v{a+2}
            v_mul_f32 v{a+3}, s70, v{a+3}
            v_cvt_pk_bf16_f32 v{a}, v{a}, v{a+1}
            v_cvt_pk_bf16_f32 v{a+1}, v{a+2}, v{a+3}
            s_mul_i32 s66, s61, {2 * NG * 2048}
            s_add_u32 s66, s66, {OFF_AT + ((rt >> 1) * NG + grp) * 2048}
            buffer_store_dwordx2 v[{a}:{a+1}], v4, s[{S_WS}:{S_WS+3}], s66 offen
            """)
    g("s_branch K1_END")
    g.label("K1_GEMM_B")
    for rt in range(4):
        for s in range(8):
            c = f"v[{vAC(rt)}:{vAC(rt)+15}]" if s else "0"
            g(f"v_mfma_f32_32x32x16_bf16 v[{vAC(rt)}:{vAC(rt)+15}], v[{vWF(s, 0)}:{vWF(s, 0)+3}], v[{vHF(rt, s)}:{vHF(rt, s)+3}], {c}")
    g(f"""
    v_cmp_gt_u32 s[72:73], {BN - 32}, v2
    v_lshlrev_b32 v5, 3, v3                      ; 8*hf
    s_lshl_b32 s64, s63, 6                       ; 32t*2
    s_add_u32 s64, s64, {OFF_B}
    """)
    for rt in range(4):
        g(f"v_add_u32 v4, v{232 + rt}, v5")
        if rt & 1:
            lab = g.newlabel("K1_skipC")
            g(f"""
            s_mov_b64 s[74:75], exec
            s_and_b64 exec, exec, s[72:73]
            s_cbranch_execz {lab}
            """)
        for u in range(4):
            a = vAC(rt) + 4 * u
            g(f"""
            v_mul_f32 v{a}, s70, v{a}
            v_mul_f32 v{a+1}, s70, v{a+1}
            v_mul_f32 v{a+2}, s70, v{a+2}
            v_mul_f32 v{a+3}, s70, v{a+3}
            v_cvt_pk_bf16_f32 v{a}, v{a}, v{a+1}
            v_cvt_pk_bf16_f32 v{a+1}, v{a+2}, v{a+3}
            buffer_store_dwordx2 v[{a}:{a+1}], v4, s[{S_WS}:{S_WS+3}], s64 offen offset:{16 * u}
            """)
        if rt & 1:
            g.label(lab)
            g("s_mov_b64 exec, s[74:75]")
    g("s_branch K1_END")

    g.label("K1_WPREP")
    g(f"""
    v_and_b32 v2, 31, v1
    v_lshrrev_b32 v3, 5, v1
    v_lshlrev_b32 v4, 11, v3          ; 8*kh*256
    v_lshlrev_b32 v5, 1, v2
    v_add_u32 v4, v4, v5              ; + n*2
    v_lshlrev_b32 v6, 4, v1           ; lane*16
    """)
    g(f"""
    s_lshr_b32 s61, s60, 1            ; t
    s_and_b32 s62, s60, 1
    s_lshl_b32 s62, s62, 3            ; 8*(w&1)
    s_lshl_b32 s63, s61, 6            ; 32t*2
    v_add_u32 v4, s63, v4
    s_lshl_b32 s64, s62, 12           ; s0*16*256
    s_lshl_b32 s65, s60, 13           ; 8w*1024
    s_add_u32 s65, s65, {OFF_WHF}
    """)
    for i in range(8):
        for j in range(8):
            g(f"buffer_load_ushort v{64 + 8*i + j}, v4, s[{S_WH}:{S_WH+3}], s64 offen offset:{j * 256}")
        g("s_add_u32 s64, s64, 4096")
    g(f"""
    s_cmp_gt_u32 s60, 1
    s_cbranch_scc1 K1_W_NOF5
    s_lshl_b32 s66, s60, 7            ; 64w*2
    v_lshlrev_b32 v40, 1, v1
    v_add_u32 v40, s66, v40
    """)
    g("s_mov_b32 s67, 65536")
    for k in range(5):
        g(f"buffer_load_ushort v{41 + k}, v40, s[{S_WE}:{S_WE+3}], s67 offen offset:{256 * k}")
    g(f"""
    s_mov_b32 s70, 0x{C1:08x}
    s_waitcnt vmcnt(0)
    """)
    for k in range(5):
        g(f"v_lshlrev_b32 v{41+k}, 16, v{41+k}")
        g(f"v_mul_f32 v{41+k}, s70, v{41+k}")
    g(f"""
    v_mov_b32 v46, 0
    v_cvt_pk_bf16_f32 v48, v42, v43
    v_cvt_pk_bf16_f32 v49, v44, v45
    v_cvt_pk_bf16_f32 v50, v41, v46
    v_mov_b32 v51, 0
    s_lshl_b32 s66, s60, 10           ; 64w*16
    s_add_u32 s66, s66, {OFF_WF5}
    buffer_store_dwordx4 v[48:51], v6, s[{S_WS}:{S_WS+3}], s66 offen
    """)
    g.label("K1_W_NOF5")
    g("s_waitcnt vmcnt(0)")
    for i in range(8):
        for d in range(4):
            g(f"v_lshl_or_b32 v{8 + 4*i + d}, v{64 + 8*i + 2*d + 1}, 16, v{64 + 8*i + 2*d}")
    for i in range(8):
        g(f"buffer_store_dwordx4 v[{8+4*i}:{11+4*i}], v6, s[{S_WS}:{S_WS+3}], s65 offen offset:{1024 * i}" if i < 4 else
          f"buffer_store_dwordx4 v[{8+4*i}:{11+4*i}], v7, s[{S_WS}:{S_WS+3}], s65 offen offset:{1024 * (i - 4)}")
        if i == 3:
            g("v_add_u32 v7, 4096, v6")
    g.label("K1_END")
    if RT:
        g(f"""
        s_mov_b64 exec, -1
        s_waitcnt vmcnt(0) lgkmcnt(0)
        s_memrealtime s[92:93]
        s_load_dwordx2 s[18:19], s[0:1], 80
        s_waitcnt lgkmcnt(0)
        """)
        srd(g, 48, 18, WS_BYTES)
        g(f"""
        v_mov_b32 v2, s90
        v_mov_b32 v3, s92
        s_lshl_b32 s61, s2, 4
        s_add_u32 s61, s61, {56 << 20}
        v_cmp_eq_u32 vcc, 0, v0
        s_and_saveexec_b64 s[62:63], vcc
        s_cbranch_execz K1_END2
        v_mov_b32 v4, 0
        buffer_store_dwordx2 v[2:3], v4, s[48:51], s61 offen
        """)
        g.label("K1_END2")
    g("s_endpgm")


def kd(name, vgpr, sgpr=102):
    return f""".amdhsa_kernel {name}
  .amdhsa_next_free_vgpr {vgpr}
  .amdhsa_next_free_sgpr {sgpr}
  .amdhsa_accum_offset {vgpr}
  .amdhsa_group_segment_fixed_size 0
  .amdhsa_kernarg_size 88
  .amdhsa_user_sgpr_count 2
  .amdhsa_user_sgpr_kernarg_segment_ptr 1
  .amdhsa_system_sgpr_workgroup_id_x 1
.end_amdhsa_kernel
"""


def header():
    ref = open("standalone__cheap_equivariant_egnn__graph.s.ref").read()
    return ref.split("; Override launch geometry")[0]


def build(k2fn=None, k2_lds=0, k2_grid=250):
    txt = header()
    txt += f"; @launch kernel={K1} grid=(254,1,1) block=(512,1,1) lds=2048\n"
    if k2fn:
        txt += f"; @launch kernel={K2} grid=({k2_grid},1,1) block=(512,1,1) lds={k2_lds}\n"
    txt += '.amdgcn_target "amdgcn-amd-amdhsa--gfx950"\n.text\n'
    g = Gen()
    k1(g)
    txt += f".globl {K1}\n.p2align 8\n.type {K1},@function\n" + g.finalize()
    if k2fn:
        g2 = Gen()
        k2fn(g2)
        txt += f".globl {K2}\n.p2align 8\n.type {K2},@function\n" + g2.finalize()
    txt += '.section .rodata,"a"\n.p2align 6\n' + kd(K1, 240)
    if k2fn:
        txt += ".p2align 6\n" + kd(K2, 256)
    return txt


if __name__ == "__main__":
    out = sys.argv[1] if len(sys.argv) > 1 else "k1.s"
    open(out, "w").write(build())
    print("wrote", out)
```

```python
from gen import *
import os
OPT = set(os.environ.get('K2OPT', '').split(','))

L_BST = 0
L_REC = 65536
CAPT = 63
CAP = CAPT * 32
L_META = L_REC + CAP * 16
L_SSC = L_META + CAP * 4
L_MACC = L_SSC + 8 * 2048
MROW = 528
L_AT = L_MACC + BN * MROW
L_LUT = L_AT + NG * 2048
L_GCNT = L_LUT + 128
L_GBASE = L_GCNT + 32
L_BLK = L_GBASE + 32
L_END = L_BLK + 512
assert L_END <= 163840, L_END
FASTMAX = CAP - NG * 31

vRD = lambda s: 4 + s
vCS = lambda j: 12 + j
vI0, vI1 = 20, 24
vWF = lambda t: 28 + 4 * t
vWX = lambda t: 44 + t
vSrd, vSwr, vSz, vMask, vOr, vMetaRd, vMe, vRecS, vRecF, vFl, vTinfo, vFlp = 48, 49, 50, 51, 52, 53, 54, 55, 56, 57, 58, 59
vZero4 = 60
vSeg = lambda t: 64 + 16 * t
vRow = lambda s: 128 + 4 * s
vZa, vZb, vT, vP = 160, 176, 192, 208
vF, vS = 216, 220
vMeta = lambda j: 228 + j
vMeV, vSv, vFaddr, vSwaddr = 236, 237, 238, 239
vTmp = lambda i: 240 + i
vSn = 244
vPay16 = lambda i: 64 + 4 * i
vPay4 = lambda i: 128 + i
vRank = lambda i: 144 + i

S_WS, S_H, S_OUT, S_POS, S_WX = 16, 20, 24, 28, 32
sW, sNB = 36, 37
sTE = lambda g: 38 + g
sT, sTau, sTau1, sG, sNV, sTn, sGn, sNVn, sHas = 46, 47, 48, 49, 50, 51, 52, 53, 54
sBST, sKH, sMHI = 55, 56, 58
sL31 = 14
sEndG = 45
sMaskSlot = lambda i: 64 + 2 * i


def onehot4(g, dst, vx, vlo, vhi):
    for d in range(4):
        g(f"""
        v_cmp_eq_u32 vcc, {2*d}, v{vx}
        v_cndmask_b32 v{dst+d}, 0, v{vlo}, vcc
        v_cmp_eq_u32 vcc, {2*d+1}, v{vx}
        v_cndmask_b32 v{dst+d}, v{dst+d}, v{vhi}, vcc
        """)


def mfma(g, d, a, b, c):
    cs = "0" if c is None else f"v[{c}:{c+15}]"
    g(f"v_mfma_f32_32x32x16_bf16 v[{d}:{d+15}], v[{a}:{a+3}], v[{b}:{b+3}], {cs}")


def zmfma(g, t, z):
    mfma(g, z, vF, vWF(t), None)
    mfma(g, z, vRow(2 * t), vI0, z)
    mfma(g, z, vRow(2 * t + 1), vI1, z)


def silu(g, z, inject=None):
    inject = inject or {}
    if 'nosilu' in OPT:
        for i in range(8): g(f"v_cvt_pk_bf16_f32 v{vP+i}, v{z+2*i}, v{z+2*i+1}")
        for k in sorted(inject): inject[k](g)
        return
    ins = [f"v_exp_f32 v{vT+i}, v{z+i}" for i in range(16)]
    ins += [f"v_add_f32 v{vT+i}, 1.0, v{vT+i}" for i in range(16)]
    ins += [f"v_rcp_f32 v{vT+i}, v{vT+i}" for i in range(16)]
    ins += [f"v_mul_f32 v{vT+i}, v{z+i}, v{vT+i}" for i in range(16)]
    ins += [f"v_cvt_pk_bf16_f32 v{vP+i}, v{vT+2*i}, v{vT+2*i+1}" for i in range(8)]
    for k, l in enumerate(ins):
        if k in inject: inject[k](g)
        g(l)


def segmfma(g, t):
    mfma(g, vSeg(t), vS, vP, vSeg(t))
    mfma(g, vSeg(t), vS + 4, vP + 4, vSeg(t))


def prep_reads(g, st):
    g(f"""
    s_lshl_b32 s59, s{st}, 7
    s_lshl_b32 s60, s{st}, 9
    v_add_u32 v{vTmp(0)}, s59, v{vMetaRd}
    v_add_u32 v{vTmp(1)}, s59, v{vMe}
    v_add_u32 v{vTmp(2)}, s60, v{vRecS}
    ds_read_b128 v[{vMeta(0)}:{vMeta(3)}], v{vTmp(0)}
    ds_read_b128 v[{vMeta(4)}:{vMeta(7)}], v{vTmp(0)} offset:16
    ds_read_b32 v{vMeV}, v{vTmp(1)}
    ds_read_b32 v{vSv}, v{vTmp(2)}
    """)


def prep_zero(g):
    g(f"""
    ds_write_b128 v{vSz}, v[{vZero4}:{vZero4+3}]
    ds_write_b128 v{vSz}, v[{vZero4}:{vZero4+3}] offset:1024
    """)


def prep_issue(g, st, snv):
    for j in range(8):
        g(f"v_and_or_b32 v{vMeta(j)}, v{vMeta(j)}, s{sMHI}, v{vCS(j)}")
    for j in range(8):
        g(f"""
        s_add_u32 m0, s{sBST}, {1024 * j}
        buffer_load_dwordx4 v{vMeta(j)}, s[{S_WS}:{S_WS+3}], 0 offen lds
        """ if 'nodma' not in OPT else "")
    g(f"""
    v_and_b32 v{vTmp(0)}, 7, v{vMeV}                          ; slot
    s_mov_b32 s59, {L_LUT}
    v_lshl_add_u32 v{vTmp(1)}, v{vTmp(0)}, 4, s59
    s_lshl_b32 s60, s{st}, 9
    v_add_u32 v{vTmp(2)}, s60, v{vRecF}
    v_cndmask_b32 v{vFaddr}, v{vTmp(1)}, v{vTmp(2)}, s[{sKH}:{sKH+1}]
    v_lshl_add_u32 v{vSwaddr}, v{vTmp(0)}, 8, v{vSwr}
    v_and_or_b32 v{vSv}, v{vSv}, v{vMask}, v{vOr}
    v_cmp_gt_u32 vcc, s{snv}, v2
    s_mov_b64 exec, vcc
    ds_write_b16 v{vSwaddr}, v{vSv}
    ds_write_b16_d16_hi v{vSwaddr}, v{vSv} offset:64
    s_mov_b64 exec, -1
    """)


def load_wf(g, sg=None):
    sg = sG if sg is None else sg
    g(f"""
    s_lshl_b32 s59, s{sg}, 11
    s_add_u32 s59, s59, {L_AT}
    v_lshlrev_b32 v{vTmp(0)}, 4, v2
    v_add_u32 v{vTmp(0)}, s59, v{vTmp(0)}
    s_mov_b64 exec, 0xffffffff
    """)
    for t in range(4):
        g(f"ds_read_b128 v[{vWF(t)}:{vWF(t)+3}], v{vTmp(0)} offset:{512 * t}")
    g("s_mov_b64 exec, -1")


def flush_common(g):
    for i in range(4):
        for x in range(1, 4):
            d = vT + 3 * i + (x - 1)
            g(f"v_mul_f32 v{d}, v{vWX(0)}, v{vSeg(0) + 4*i + x}")
            for t in range(1, 4):
                g(f"v_fmac_f32 v{d}, v{vWX(t)}, v{vSeg(t) + 4*i + x}")
    for sh in (1, 2, 4, 8):
        for k in range(12):
            g(f"v_add_f32_dpp v{vT+k}, v{vT+k}, v{vT+k} row_shr:{sh} row_mask:0xf bank_mask:0xf bound_ctrl:0")
    for k in range(12):
        g(f"v_add_f32_dpp v{vT+k}, v{vT+k}, v{vT+k} row_bcast:15 row_mask:0xa bank_mask:0xf")


def flush_mid(g):
    flush_common(g)
    g(f"""
    s_mul_i32 s59, s{sG}, {8 * MROW}
    v_add_u32 v{vTmp(0)}, s59, v{vFl}
    v_add_u32 v{vTmp(1)}, s59, v{vFlp}
    """)
    pt = lambda k: (vP + k) if k < 8 else vMeta(k - 8)
    for t in range(4):
        for i in range(4):
            g(f"ds_read_b32 v{vZb + 4*t + i}, v{vTmp(0)} offset:{2 * i * MROW + 128 * t}")
            if 4 * t + i == 13: g("s_waitcnt lgkmcnt(6)")
    g(f"s_mov_b64 exec, s[{sL31}:{sL31+1}]")
    for i in range(4):
        for x in range(3):
            g(f"ds_read_b32 v{pt(3*i + x)}, v{vTmp(1)} offset:{2 * i * MROW + 512 + 4 * x}")
    g("s_waitcnt lgkmcnt(0)")
    for i in range(4):
        for x in range(3):
            g(f"v_add_f32 v{pt(3*i + x)}, v{pt(3*i + x)}, v{vT + 3*i + x}")
    for i in range(4):
        for x in range(3):
            g(f"ds_write_b32 v{vTmp(1)}, v{pt(3*i + x)} offset:{2 * i * MROW + 512 + 4 * x}")
    g("s_mov_b64 exec, -1")
    for t in range(4):
        for i in range(4):
            g(f"v_add_f32 v{vZb + 4*t + i}, v{vZb + 4*t + i}, v{vSeg(t) + 4*i}")
    g("s_waitcnt lgkmcnt(2)")
    for t in range(4):
        for i in range(4):
            g(f"ds_write_b32 v{vTmp(0)}, v{vZb + 4*t + i} offset:{2 * i * MROW + 128 * t}")


def flush_end(g):
    flush_common(g)
    g(f"""
    s_sub_u32 s59, s{sBST}, {L_MACC}
    v_add_u32 v{vTmp(0)}, s59, v{vFl}
    v_add_u32 v{vTmp(1)}, s59, v{vFlp}
    """)
    for t in range(4):
        for i in range(4):
            g(f"ds_write_b32 v{vTmp(0)}, v{vSeg(t) + 4*i} offset:{2 * i * MROW + 128 * t}")
    g(f"s_mov_b64 exec, s[{sL31}:{sL31+1}]")
    for i in range(4):
        for x in range(3):
            g(f"ds_write_b32 v{vTmp(1)}, v{vT + 3*i + x} offset:{2 * i * MROW + 512 + 4 * x}")
    g("s_mov_b64 exec, -1")


def stamp(g, k, on):
    if on:
        g(f"""
        s_memtime s[98:99]
        s_waitcnt lgkmcnt(0)
        v_writelane_b32 v255, s98, {k}
        """)


def istamp(g, k, on):
    if on:
        g(f"""
        s_memtime s[98:99]
        s_add_u32 s100, s101, {k}
        s_waitcnt lgkmcnt(0)
        s_mov_b32 m0, s100
        v_writelane_b32 v254, s98, m0
        """)


def k2(g, dbg=None):
    st = dbg == "time"
    g.label(K2)
    if RT: g("s_memrealtime s[92:93]")
    g(f"""
    s_cmp_ge_u32 s2, {NB}
    s_cbranch_scc1 K2_END
    s_load_dwordx2 s[4:5], s[0:1], 0
    s_load_dwordx2 s[6:7], s[0:1], 8
    s_load_dwordx2 s[8:9], s[0:1], 48
    s_load_dwordx2 s[10:11], s[0:1], 64
    s_load_dwordx2 s[12:13], s[0:1], 80
    v_and_b32 v1, 63, v0
    v_and_b32 v2, 31, v1
    v_lshrrev_b32 v3, 5, v1
    v_lshrrev_b32 v192, 6, v0
    v_readfirstlane_b32 s{sW}, v192
    s_mul_i32 s{sNB}, s2, {BN}
    s_waitcnt lgkmcnt(0)
    """)
    stamp(g, 0, st)
    srd(g, S_H, 4, N * 256)
    srd(g, S_POS, 6, N * 6)
    srd(g, S_WX, 8, 256)
    srd(g, S_OUT, 10, 1637500 * 2)
    srd(g, S_WS, 12, WS_BYTES)
    vDraw, vTa, vTb = vTmp(0), vTmp(1), vTmp(2)
    g(f"""
    s_lshl_b32 s59, s2, 9
    s_add_u32 s59, s59, {OFF_TAB}
    v_and_b32 v193, 15, v1
    s_lshl_b32 s60, s{sW}, 6
    v_lshlrev_b32 v193, 2, v193
    v_add_u32 v193, s60, v193
    v_lshlrev_b32 v194, 2, v1                       ; lane*4
    v_lshlrev_b32 v195, 4, v1                       ; lane*16
    buffer_load_dword v{vDraw}, v193, s[{S_WS}:{S_WS+3}], s59 offen
    buffer_load_dword v{vTa}, v194, s[{S_WS}:{S_WS+3}], s59 offen
    buffer_load_dword v{vTb}, v194, s[{S_WS}:{S_WS+3}], s59 offen offset:256
    s_mul_i32 s61, s2, {NG * 2048}
    s_add_u32 s61, s61, {OFF_AT}
    s_lshl_b32 s62, s{sW}, 10
    s_add_u32 s63, s61, s62
    s_add_u32 m0, s62, {L_AT}
    buffer_load_dwordx4 v195, s[{S_WS}:{S_WS+3}], s63 offen lds
    s_cmp_ge_u32 s{sW}, {2 * NG - 8}
    s_cbranch_scc1 K2_noat2
    s_add_u32 s63, s63, 8192
    s_add_u32 m0, s62, {L_AT + 8192}
    buffer_load_dwordx4 v195, s[{S_WS}:{S_WS+3}], s63 offen lds
    """)
    g.label("K2_noat2")
    g(f"""
    v_lshlrev_b32 v193, 4, v2                       ; n*16
    s_mov_b32 s59, {OFF_WF5}
    """)
    for t in range(4):
        g(f"buffer_load_dwordx4 v[{vWF(t)}:{vWF(t)+3}], v193, s[{S_WS}:{S_WS+3}], s59 offen offset:{512 * t}")
    g("v_lshlrev_b32 v193, 1, v2")
    for t in range(4):
        g(f"buffer_load_ushort v{vWX(t)}, v193, s[{S_WX}:{S_WX+3}], 0 offen offset:{64 * t}")
    g(f"""
    s_lshl_b32 s{sBST}, s{sW}, 13
    s_mov_b32 s{sKH}, 0
    s_mov_b32 s{sKH+1}, -1
    s_mov_b32 s{sMHI}, 0xffffff00
    s_mov_b32 s{sL31}, 0x80000000
    s_mov_b32 s{sL31+1}, 0x80000000
    s_mov_b32 s{sEndG}, 7
    v_mov_b32 v{vZero4}, 0
    v_mov_b32 v{vZero4+1}, 0
    v_mov_b32 v{vZero4+2}, 0
    v_mov_b32 v{vZero4+3}, 0
    v_and_b32 v192, 7, v2
    v_lshlrev_b32 v192, 2, v192
    v_lshrrev_b32 v193, 3, v2
    v_add_u32 v192, v192, v193
    v_lshlrev_b32 v192, 8, v192
    v_add_u32 v192, s{sBST}, v192
    v_and_b32 v193, 15, v2                          ; m&15
    """)
    for s in range(8):
        g(f"""
        v_add_u32 v194, {2*s}, v3
        v_xor_b32 v194, v194, v193
        v_lshl_add_u32 v{vRD(s)}, v194, 4, v192
        """)
    g("""
    v_and_b32 v193, 15, v1
    v_bfe_u32 v194, v1, 4, 1
    v_lshlrev_b32 v194, 3, v194
    v_xor_b32 v193, v193, v194
    """)
    for j in range(8):
        g(f"""
        v_xor_b32 v194, {j}, v193
        v_lshlrev_b32 v{vCS(j)}, 4, v194
        """)
    g(f"""
    v_mov_b32 v196, 0x3f80
    v_mov_b32 v197, 0x3f800000
    v_lshlrev_b32 v192, 3, v3
    v_sub_u32 v192, v2, v192                          ; n - 8kh
    """)
    onehot4(g, vI0, 192, 196, 197)
    g("v_subrev_u32 v192, 16, v192")
    onehot4(g, vI1, 192, 196, 197)
    g(f"""
    s_lshl_b32 s59, s{sW}, 11
    s_add_u32 s59, s59, {L_SSC}
    v_lshlrev_b32 v192, 6, v2
    v_lshl_add_u32 v192, v3, 4, v192
    v_add_u32 v{vSrd}, s59, v192                    ; m*64 + kh*16
    v_lshlrev_b32 v192, 4, v1
    v_add_u32 v{vSz}, s59, v192
    ; p(m)*2 + h*128
    v_lshrrev_b32 v192, 4, v2
    v_lshlrev_b32 v192, 5, v192                       ; 16*(m>>4)*2
    v_bfe_u32 v193, v2, 2, 1
    v_lshl_add_u32 v192, v193, 4, v192                  ; + 8*((m>>2)&1)*2
    v_bfe_u32 v193, v2, 3, 1
    v_lshl_add_u32 v192, v193, 3, v192                  ; + 4*((m>>3)&1)*2
    v_and_b32 v193, 3, v2
    v_lshl_add_u32 v192, v193, 1, v192                  ; + (m&3)*2
    v_lshl_add_u32 v192, v3, 7, v192                  ; + h*128
    v_add_u32 v{vSwr}, s59, v192
    v_mov_b32 v192, 0xffff0000
    v_mov_b32 v193, -1
    v_cndmask_b32 v{vMask}, v192, v193, s[{sKH}:{sKH+1}]
    v_mov_b32 v193, 0
    v_cndmask_b32 v{vOr}, v196, v193, s[{sKH}:{sKH+1}]
    v_lshrrev_b32 v192, 4, v1
    v_lshlrev_b32 v192, 5, v192
    v_add_u32 v{vMetaRd}, {L_META}, v192
    v_lshlrev_b32 v192, 2, v2
    v_add_u32 v{vMe}, {L_META}, v192
    v_lshlrev_b32 v192, 4, v2
    v_add_u32 v{vRecF}, {L_REC}, v192
    v_lshlrev_b32 v193, 2, v3
    v_add3_u32 v{vRecS}, v{vRecF}, v193, 8          ; + 8 + 4h
    v_mul_u32_u24 v192, {MROW}, v3
    v_add_u32 v{vFlp}, {L_MACC}, v192
    v_lshlrev_b32 v193, 2, v2
    v_add_u32 v{vFl}, v{vFlp}, v193
    """)
    g(f"""
    v_lshlrev_b32 v192, 4, v0
    v_add_u32 v192, {L_MACC}, v192
    ds_write_b128 v192, v[{vZero4}:{vZero4+3}]
    ds_write_b128 v192, v[{vZero4}:{vZero4+3}] offset:8192
    ds_write_b128 v192, v[{vZero4}:{vZero4+3}] offset:16384
    v_cmp_gt_u32 vcc, {(BN * MROW - 24576) // 16}, v0
    s_and_saveexec_b64 s[62:63], vcc
    s_cbranch_execz K2_z1
    ds_write_b128 v192, v[{vZero4}:{vZero4+3}] offset:24576
    """)
    g.label("K2_z1")
    g(f"""
    s_mov_b64 exec, s[62:63]
    s_cmp_lg_u32 s{sW}, 0
    s_cbranch_scc1 K2_z2
    """)
    onehot4(g, 204, 1, 196, 197)
    g(f"""
    v_cmp_gt_u32 vcc, 8, v1
    s_and_saveexec_b64 s[62:63], vcc
    v_lshlrev_b32 v192, 4, v1
    v_add_u32 v192, {L_LUT}, v192
    ds_write_b128 v192, v[204:207]
    v_lshlrev_b32 v192, 2, v1
    v_add_u32 v192, {L_GCNT}, v192
    ds_write_b32 v192, v{vZero4}
    s_mov_b64 exec, s[62:63]
    """)
    g.label("K2_z2")
    stamp(g, 1, st)
    g("s_waitcnt vmcnt(0)")
    stamp(g, 14, st)
    g(f"""
    v_lshrrev_b32 v192, 16, v{vTa}
    v_lshrrev_b32 v193, 16, v{vTb}
    v_max_u32 v194, v192, v193
    v_cmp_lt_u32 vcc, 64, v194
    s_cmp_lg_u64 vcc, 0
    s_cbranch_scc1 K2_SLOW
    v_add_u32 v192, v192, v193
    v_add_u32_dpp v192, v192, v192 row_shr:1 row_mask:0xf bank_mask:0xf bound_ctrl:0
    v_add_u32_dpp v192, v192, v192 row_shr:2 row_mask:0xf bank_mask:0xf bound_ctrl:0
    v_add_u32_dpp v192, v192, v192 row_shr:4 row_mask:0xf bank_mask:0xf bound_ctrl:0
    v_add_u32_dpp v192, v192, v192 row_shr:8 row_mask:0xf bank_mask:0xf bound_ctrl:0
    v_add_u32_dpp v192, v192, v192 row_bcast:15 row_mask:0xa bank_mask:0xf
    v_add_u32_dpp v192, v192, v192 row_bcast:31 row_mask:0xc bank_mask:0xf
    v_readlane_b32 s59, v192, 63
    s_cmp_gt_u32 s59, {FASTMAX}
    s_cbranch_scc1 K2_SLOW
    v_and_b32 v192, 15, v1
    s_lshl_b32 s59, s{sW}, 4
    v_add_u32 v192, s59, v192
    v_mul_u32_u24 v192, {C}, v192
    v_and_b32 v193, 0xffff, v{vDraw}
    v_add_u32 v192, v192, v193
    v_lshrrev_b32 v193, 16, v{vDraw}
    v_lshl_or_b32 v192, v193, 20, v192
    v_lshlrev_b32 v194, 2, v1
    """)
    for i in range(16):
        mk = sMaskSlot(i)
        g(f"""
        v_readlane_b32 s59, v192, {i}
        s_lshr_b32 s60, s59, 20
        s_and_b32 s59, s59, 0xfffff
        v_cmp_gt_u32 s[{mk}:{mk+1}], s60, v1
        s_lshl_b32 s61, s59, 4
        s_add_u32 s61, s61, {OFF_P16}
        s_lshl_b32 s59, s59, 2
        s_add_u32 s59, s59, {OFF_P4}
        s_mov_b64 exec, s[{mk}:{mk+1}]
        buffer_load_dword v{vPay4(i)}, v194, s[{S_WS}:{S_WS+3}], s59 offen
        buffer_load_dwordx4 v[{vPay16(i)}:{vPay16(i)+3}], v195, s[{S_WS}:{S_WS+3}], s61 offen
        s_mov_b64 exec, -1
        """)
    stamp(g, 15, st)
    for t in range(4):
        g(f"v_lshlrev_b32 v{vWX(t)}, 16, v{vWX(t)}")
    stamp(g, 2, st)
    g(f"""
    s_waitcnt lgkmcnt(0)
    s_barrier
    v_mov_b32 v192, 1
    s_mov_b32 s59, {L_GCNT}
    """)
    for i in range(16):
        mk = sMaskSlot(i)
        g(f"""
        s_waitcnt vmcnt({2 * (15 - i) + 1})
        v_bfe_u32 v193, v{vPay4(i)}, 3, 3
        v_lshl_add_u32 v193, v193, 2, s59
        s_mov_b64 exec, s[{mk}:{mk+1}]
        ds_add_rtn_u32 v{vRank(i)}, v193, v192
        s_mov_b64 exec, -1
        """)
    stamp(g, 16, st)
    g(f"""
    s_waitcnt lgkmcnt(0)
    s_barrier
    v_and_b32 v192, 7, v1
    v_lshlrev_b32 v192, 2, v192
    v_add_u32 v193, {L_GCNT}, v192
    ds_read_b32 v196, v193
    s_waitcnt lgkmcnt(0)
    """)
    stamp(g, 3, st)
    g("s_mov_b32 s96, 0")
    vVe, vBase = 198, 199
    for gi in range(NG):
        g(f"""
        v_readlane_b32 s97, v196, {gi}
        v_writelane_b32 v{vBase}, s96, {gi}
        s_add_u32 s98, s96, s97
        v_writelane_b32 v{vVe}, s98, {gi}
        s_add_u32 s96, s98, 31
        s_and_b32 s96, s96, 0xffffffe0
        s_lshr_b32 s{sTE(gi)}, s96, 5
        """)
    g(f"""
    s_mov_b32 s{sT}, s{sTE(NG-1)}
    v_cmp_gt_u32 vcc, 8, v1
    v_add_u32 v193, {L_GBASE}, v192
    s_mov_b64 exec, vcc
    ds_write_b32 v193, v{vBase}
    s_mov_b64 exec, -1
    v_mov_b32 v200, 0
    """)
    for gi in range(NG - 1):
        g(f"""
        v_cmp_le_u32 vcc, s{sTE(gi)}, v1
        v_addc_co_u32 v200, vcc, 0, v200, vcc
        """)
    g(f"""
    v_lshlrev_b32 v201, 2, v200
    ds_bpermute_b32 v201, v201, v{vVe}
    v_lshlrev_b32 v202, 5, v1
    s_waitcnt lgkmcnt(0)
    v_sub_u32 v201, v201, v202
    v_min_u32 v201, 32, v201
    v_lshl_or_b32 v{vTinfo}, v201, 8, v200
    ; ---- place phase
    s_mov_b32 s59, {L_GBASE}
    s_mov_b32 s60, {L_REC}
    s_mov_b32 s61, {L_META}
    """)
    for i in range(16):
        g(f"""
        v_bfe_u32 v193, v{vPay4(i)}, 3, 3
        v_lshl_add_u32 v193, v193, 2, s59
        ds_read_b32 v{vTmp(i % 8)}, v193
        """) if False else None
    vBs = lambda i: vZa + i
    for i in range(16):
        g(f"""
        v_bfe_u32 v193, v{vPay4(i)}, 3, 3
        v_lshl_add_u32 v193, v193, 2, s59
        ds_read_b32 v{vBs(i)}, v193
        """)
    g("s_waitcnt vmcnt(0) lgkmcnt(8)")
    for i in range(16):
        mk = sMaskSlot(i)
        if i == 8: g("s_waitcnt lgkmcnt(8)")
        g(f"""
        v_add_u32 v194, v{vBs(i)}, v{vRank(i)}
        v_and_b32 v195, 0xffffff07, v{vPay4(i)}
        v_lshl_add_u32 v192, v194, 4, s60
        v_lshl_add_u32 v193, v194, 2, s61
        s_mov_b64 exec, s[{mk}:{mk+1}]
        ds_write_b128 v192, v[{vPay16(i)}:{vPay16(i)+3}]
        ds_write_b32 v193, v195
        s_mov_b64 exec, -1
        """)
    stamp(g, 17, st)
    g(f"""
    s_cmp_ge_u32 s{sW}, {NG}
    s_cbranch_scc1 K2_nopad
    v_readlane_b32 s96, v{vVe}, s{sW}
    s_add_u32 s97, s96, 31
    s_and_b32 s97, s97, 0xffffffe0
    v_add_u32 v194, s96, v1
    v_cmp_gt_u32 vcc, s97, v194
    s_and_saveexec_b64 s[62:63], vcc
    s_cbranch_execz K2_nopad2
    v_lshl_add_u32 v192, v194, 4, s60
    ds_write_b128 v192, v[{vZero4}:{vZero4+3}]
    v_lshl_add_u32 v192, v194, 2, s61
    ds_write_b32 v192, v{vZero4}
    """)
    g.label("K2_nopad2")
    g("s_mov_b64 exec, s[62:63]")
    g.label("K2_nopad")
    g(f"""
    s_waitcnt vmcnt(0) lgkmcnt(0)
    s_barrier
    """)
    if dbg == "place":
        dump_lds(g, L_REC, CAP * 20, 32 << 20)
        g("s_branch K2_END")
    stamp(g, 4, st)
    sH1, sH2, sG1, sNV2 = sHas, 61, sGn, sNVn
    def read_ops(g, sdst):
        for s_ in range(8):
            g(f"ds_read_b128 v[{vRow(s_)}:{vRow(s_)+3}], v{vRD(s_)}")
        g(f"""
        ds_read_b128 v[{vF}:{vF+3}], v{vFaddr}
        ds_read_b128 v[{sdst}:{sdst+3}], v{vSrd}
        ds_read_b128 v[{sdst+4}:{sdst+7}], v{vSrd} offset:32
        """)
    g(f"""
    s_mul_i32 s59, s{sT}, s{sW}
    s_lshr_b32 s{sTau}, s59, 3
    s_add_u32 s59, s59, s{sT}
    s_lshr_b32 s{sTau1}, s59, 3
    s_cmp_ge_u32 s{sTau}, s{sTau1}
    s_cbranch_scc1 K2_MAINDONE
    v_readlane_b32 s59, v{vTinfo}, s{sTau}
    s_and_b32 s{sG}, s59, 0xff
    s_lshr_b32 s{sNV}, s59, 8
    """)
    for r in range(64):
        g(f"v_mov_b32 v{vSeg(0) + r}, 0")
    load_wf(g)
    prep_reads(g, sTau)
    prep_zero(g)
    g("s_waitcnt lgkmcnt(0)")
    prep_issue(g, sTau, sNV)
    g("s_waitcnt vmcnt(0)")
    read_ops(g, vS)
    g(f"""
    s_add_u32 s{sTn}, s{sTau}, 1
    s_cmp_ge_u32 s{sTn}, s{sTau1}
    s_cbranch_scc1 K2_I1
    v_readlane_b32 s59, v{vTinfo}, s{sTn}
    s_lshr_b32 s{sNV}, s59, 8
    """)
    prep_reads(g, sTn)
    g("s_waitcnt lgkmcnt(4)")
    prep_zero(g)
    g("s_waitcnt lgkmcnt(2)")
    prep_issue(g, sTn, sNV)
    g.label("K2_I1")
    g("s_waitcnt lgkmcnt(0)")
    zmfma(g, 0, vZa)
    if st: g("s_mov_b32 s101, 0")
    g.label("K2_LOOP")
    istamp(g, 0, st)
    g(f"""
    s_add_u32 s{sTn}, s{sTau}, 1
    s_cmp_lt_u32 s{sTn}, s{sTau1}
    s_cselect_b32 s{sH1}, 1, 0
    s_min_u32 s59, s{sTn}, 63
    v_readlane_b32 s59, v{vTinfo}, s59
    s_add_u32 s62, s{sTau}, 2
    s_cmp_lt_u32 s62, s{sTau1}
    s_cselect_b32 s{sH2}, 1, 0
    s_min_u32 s62, s62, 63
    v_readlane_b32 s60, v{vTinfo}, s62
    s_and_b32 s{sG1}, s59, 0xff
    s_lshr_b32 s{sNV2}, s60, 8
    """)
    def zm(t, z, k):
        if k == 0: return lambda g: mfma(g, z, vF, vWF(t), None)
        if k == 1: return lambda g: mfma(g, z, vRow(2 * t), vI0, z)
        return lambda g: mfma(g, z, vRow(2 * t + 1), vI1, z)
    def sg(t, k):
        return (lambda g: mfma(g, vSeg(t), vS, vP, vSeg(t))) if k == 0 else (lambda g: mfma(g, vSeg(t), vS + 4, vP + 4, vSeg(t)))
    silu(g, vZa, {1: zm(1, vZb, 0), 5: zm(1, vZb, 1), 9: zm(1, vZb, 2)})
    istamp(g, 1, st)
    silu(g, vZb, {1: sg(0, 0), 5: sg(0, 1), 9: zm(2, vZa, 0), 13: zm(2, vZa, 1), 33: zm(2, vZa, 2)})
    istamp(g, 2, st)
    def inj_b2(g):
        lab = g.newlabel("K2_b2")
        g(f"""
        s_cmp_eq_u32 s{sH1}, 0
        s_cbranch_scc1 {lab}
        s_waitcnt vmcnt(0)
        """)
        read_ops(g, vSn)
        g.label(lab)
    silu(g, vZa, {1: sg(1, 0), 5: sg(1, 1), 9: zm(3, vZb, 0), 13: zm(3, vZb, 1), 33: zm(3, vZb, 2), 48: inj_b2})
    istamp(g, 3, st)
    g(f"""
    s_cmp_eq_u32 s{sH1}, 0
    s_cbranch_scc1 K2_B3C
    s_cmp_eq_u32 s{sH2}, 0
    s_cbranch_scc1 K2_B3A
    s_add_u32 s62, s{sTau}, 2
    """)
    prep_reads(g, 62)
    g("s_waitcnt lgkmcnt(4)")
    g.label("K2_B3A")
    g(f"""
    s_cmp_eq_u32 s{sG1}, s{sG}
    s_cbranch_scc1 K2_B3B
    """)
    load_wf(g, sG1)
    g.label("K2_B3B")
    g("s_waitcnt lgkmcnt(0)")
    zmfma(g, 0, vZa)
    g(f"""
    s_cmp_eq_u32 s{sH2}, 0
    s_cbranch_scc1 K2_B3C
    """)
    prep_zero(g)
    g(f"s_add_u32 s62, s{sTau}, 2")
    prep_issue(g, 62, sNV2)
    g.label("K2_B3C")
    silu(g, vZb, {1: sg(2, 0), 5: sg(2, 1)})
    segmfma(g, 3)
    istamp(g, 4, st)
    g(f"""
    s_cmp_eq_u32 s{sH1}, 0
    s_cbranch_scc1 K2_FLEND
    """)
    for r in range(8):
        g(f"v_mov_b32 v{vS + r}, v{vSn + r}")
    g(f"""
    s_cmp_eq_u32 s{sG1}, s{sG}
    s_cbranch_scc1 K2_NEXT
    """)
    flush_mid(g)
    g(f"s_mov_b32 s{sG}, s{sG1}")
    for r in range(64):
        g(f"v_mov_b32 v{vSeg(0) + r}, 0")
    g.label("K2_NEXT")
    if st: g("s_add_u32 s101, s101, 5")
    g(f"""
    s_mov_b32 s{sTau}, s{sTn}
    s_branch K2_LOOP
    """)
    g.label("K2_FLEND")
    flush_end(g)
    g(f"s_mov_b32 s{sEndG}, s{sG}")
    stamp(g, 13, st)
    g.label("K2_MAINDONE")
    stamp(g, 5, st)
    g(f"""
    v_mov_b32 v{vTmp(0)}, s{sEndG}
    s_lshl_b32 s59, s{sW}, 2
    s_add_u32 s59, s59, {L_GBASE}
    v_mov_b32 v{vTmp(1)}, s59
    ds_write_b32 v{vTmp(1)}, v{vTmp(0)}
    """)
    vWh = lambda s: 64 + 4 * s
    vHf = lambda s: 128 + 4 * s
    vHr = lambda u: 160 + 2 * u
    vMf = lambda s: 168 + 4 * s
    vAcc = 200
    g(f"""
    s_lshr_b32 s96, s{sW}, 2                        ; mt
    s_and_b32 s97, s{sW}, 3                         ; t
    v_lshlrev_b32 v4, 4, v1
    s_lshl_b32 s59, s97, 14
    s_add_u32 s59, s59, {OFF_WHF}
    """)
    for s in range(16):
        g(f"buffer_load_dwordx4 v[{vWh(s)}:{vWh(s)+3}], v4, s[{S_WS}:{S_WS+3}], s59 offen")
        if s < 15:
            g("s_add_u32 s59, s59, 1024")
    g(f"""
    s_lshl_b32 s59, s96, 5
    v_add_u32 v5, s59, v2
    v_add_u32 v6, s{sNB}, v5                        ; node
    v_lshlrev_b32 v6, 8, v6                         ; node*256
    v_lshl_add_u32 v7, v3, 4, v6
    """)
    for s in range(8):
        g(f"buffer_load_dwordx4 v[{vHf(s)}:{vHf(s)+3}], v7, s[{S_H}:{S_H+3}], 0 offen offset:{32 * s}")
    g(f"""
    v_lshl_add_u32 v7, v3, 3, v6
    s_lshl_b32 s60, s97, 6                          ; 64 t
    """)
    for u in range(4):
        g(f"buffer_load_dwordx2 v[{vHr(u)}:{vHr(u)+1}], v7, s[{S_H}:{S_H+3}], s60 offen offset:{16 * u}")
    g(f"""
    s_waitcnt lgkmcnt(0)
    s_barrier
    """)
    g(f"""
    v_lshlrev_b32 v{vTmp(0)}, 4, v0                 ; e*16
    v_mov_b32 v{vTmp(1)}, {L_GBASE}
    ds_read_b128 v[200:203], v{vTmp(1)}
    ds_read_b128 v[204:207], v{vTmp(1)} offset:16
    v_cmp_gt_u32 vcc, 264, v0
    s_and_saveexec_b64 s[62:63], vcc
    s_cbranch_execz K2_red_done
    """)
    for w in range(8):
        g(f"ds_read_b128 v[{168+4*w}:{171+4*w}], v{vTmp(0)} offset:{8192 * w}")
    g(f"""
    v_mul_u32_u24 v{vTmp(2)}, 497, v0
    v_lshrrev_b32 v{vTmp(2)}, 14, v{vTmp(2)}        ; row = e / 33
    s_waitcnt lgkmcnt(0)
    s_mov_b64 s[12:13], exec
    """)
    for w in range(8):
        lab = g.newlabel("K2_red")
        g(f"""
        v_readfirstlane_b32 s100, v{200+w}
        s_cmp_ge_u32 s100, {NG}
        s_cbranch_scc1 {lab}
        s_lshl_b32 s101, s100, 3
        v_add_u32 v{vTmp(3)}, s101, v{vTmp(2)}
        v_cmp_gt_u32 vcc, {BN}, v{vTmp(3)}
        s_and_b64 exec, s[12:13], vcc
        s_cbranch_execz {lab}
        s_mul_i32 s101, s100, {8 * MROW}
        s_add_u32 s101, s101, {L_MACC}
        v_add_u32 v{vTmp(3)}, s101, v{vTmp(0)}
        ds_read_b128 v[208:211], v{vTmp(3)}
        s_waitcnt lgkmcnt(0)
        v_add_f32 v208, v208, v{168+4*w}
        v_add_f32 v209, v209, v{169+4*w}
        v_add_f32 v210, v210, v{170+4*w}
        v_add_f32 v211, v211, v{171+4*w}
        ds_write_b128 v{vTmp(3)}, v[208:211]
        s_waitcnt lgkmcnt(0)
        """)
        g.label(lab)
        g("s_mov_b64 exec, s[12:13]")
    g.label("K2_red_done")
    g(f"""
    s_mov_b64 exec, s[62:63]
    s_waitcnt lgkmcnt(0)
    s_barrier
    v_mul_u32_u24 v8, {MROW}, v5
    v_lshl_add_u32 v8, v3, 5, v8
    v_add_u32 v8, {L_MACC}, v8
    s_mov_b32 s61, 0x{NLN2:08x}
    """)
    stamp(g, 6, st)
    if dbg == "macc":
        dump_lds(g, L_MACC, BN * MROW, 32 << 20)
        g("s_branch K2_END")
    for s in range(8):
        g(f"""
        ds_read_b128 v[{vTmp(0)}:{vTmp(3)}], v8 offset:{64 * s}
        ds_read_b128 v[{vTmp(4)}:{vTmp(7)}], v8 offset:{64 * s + 16}
        s_waitcnt lgkmcnt(0)
        """)
        for k in range(8):
            g(f"v_mul_f32 v{vTmp(k)}, s61, v{vTmp(k)}")
        for d in range(4):
            g(f"v_cvt_pk_bf16_f32 v{vMf(s)+d}, v{vTmp(2*d)}, v{vTmp(2*d+1)}")
    g("s_waitcnt vmcnt(0)")
    for s in range(8):
        mfma(g, vAcc, vWh(s), vHf(s), vAcc if s else None)
    for s in range(8):
        mfma(g, vAcc, vWh(8 + s), vMf(s), vAcc)
    g(f"s_mov_b32 s62, 0x{C1:08x}")
    for u in range(4):
        a = vAcc + 4 * u
        g(f"""
        v_cvt_pk_bf16_f32 v216, v{a}, v{a+1}
        v_cvt_pk_bf16_f32 v217, v{a+2}, v{a+3}
        v_lshlrev_b32 v{a}, 16, v216
        v_and_b32 v{a+1}, 0xffff0000, v216
        v_lshlrev_b32 v{a+2}, 16, v217
        v_and_b32 v{a+3}, 0xffff0000, v217
        """)
        for k in range(4):
            g(f"v_mul_f32 v{218+k}, s62, v{a+k}")
        for k in range(4):
            g(f"v_exp_f32 v{218+k}, v{218+k}")
        for k in range(4):
            g(f"v_add_f32 v{218+k}, 1.0, v{218+k}")
        for k in range(4):
            g(f"v_rcp_f32 v{218+k}, v{218+k}")
        for k in range(4):
            g(f"v_mul_f32 v{218+k}, v{a+k}, v{218+k}")
        g(f"""
        v_cvt_pk_bf16_f32 v216, v218, v219
        v_cvt_pk_bf16_f32 v217, v220, v221
        v_lshlrev_b32 v218, 16, v216
        v_and_b32 v219, 0xffff0000, v216
        v_lshlrev_b32 v220, 16, v217
        v_and_b32 v221, 0xffff0000, v217
        v_lshlrev_b32 v222, 16, v{vHr(u)}
        v_and_b32 v223, 0xffff0000, v{vHr(u)}
        v_lshlrev_b32 v224, 16, v{vHr(u)+1}
        v_and_b32 v225, 0xffff0000, v{vHr(u)+1}
        v_add_f32 v218, v218, v222
        v_add_f32 v219, v219, v223
        v_add_f32 v220, v220, v224
        v_add_f32 v221, v221, v225
        v_cvt_pk_bf16_f32 v{226+2*u}, v218, v219
        v_cvt_pk_bf16_f32 v{227+2*u}, v220, v221
        """)
    g(f"""
    v_cmp_gt_u32 vcc, {BN}, v5
    s_and_saveexec_b64 s[62:63], vcc
    s_cbranch_execz K2_nost
    """)
    for u in range(4):
        g(f"buffer_store_dwordx2 v[{226+2*u}:{227+2*u}], v7, s[{S_OUT}:{S_OUT+3}], s60 offen offset:{16 * u}")
    g.label("K2_nost")
    g("s_mov_b64 exec, s[62:63]")
    g(f"""
    s_cmp_lg_u32 s{sW}, 7
    s_cbranch_scc1 K2_END
    v_cmp_gt_u32 vcc, {BN}, v1
    s_and_saveexec_b64 s[62:63], vcc
    v_mul_u32_u24 v4, {MROW}, v1
    v_add_u32 v4, {L_MACC + 512}, v4
    ds_read_b128 v[{vTmp(0)}:{vTmp(3)}], v4
    v_add_u32 v5, s{sNB}, v1
    v_mul_u32_u24 v5, 6, v5
    buffer_load_ushort v{vTmp(4)}, v5, s[{S_POS}:{S_POS+3}], 0 offen
    buffer_load_ushort v{vTmp(5)}, v5, s[{S_POS}:{S_POS+3}], 0 offen offset:2
    buffer_load_ushort v{vTmp(6)}, v5, s[{S_POS}:{S_POS+3}], 0 offen offset:4
    s_mov_b32 s60, 3200000
    s_waitcnt vmcnt(0) lgkmcnt(0)
    """)
    for x in range(3):
        g(f"""
        v_lshlrev_b32 v{vTmp(4+x)}, 16, v{vTmp(4+x)}
        v_fmac_f32 v{vTmp(4+x)}, s61, v{vTmp(x)}
        v_cvt_pk_bf16_f32 v{vTmp(4+x)}, v{vTmp(4+x)}, v{vTmp(4+x)}
        buffer_store_short v{vTmp(4+x)}, v5, s[{S_OUT}:{S_OUT+3}], s60 offen offset:{2 * x}
        """)
    g("s_mov_b64 exec, s[62:63]")
    g("s_branch K2_END")
    g.label("K2_SLOW")
    g("s_branch K2_END")
    g.label("K2_END")
    if st:
        stamp(g, 7, st)
        g(f"""
        s_mov_b64 exec, -1
        s_cmp_ge_u32 s2, {NB}
        s_cbranch_scc1 K2_END2
        v_lshlrev_b32 v4, 2, v1
        s_lshl_b32 s59, s2, 3
        s_add_u32 s59, s59, s{sW}
        s_lshl_b32 s59, s59, 8
        s_add_u32 s59, s59, {48 << 20}
        buffer_store_dword v255, v4, s[{S_WS}:{S_WS+3}], s59 offen
        s_add_u32 s59, s59, {1 << 20}
        buffer_store_dword v254, v4, s[{S_WS}:{S_WS+3}], s59 offen
        """)
        g.label("K2_END2")
    if RT:
        g(f"""
        s_mov_b64 exec, -1
        s_waitcnt vmcnt(0) lgkmcnt(0)
        s_memrealtime s[94:95]
        s_load_dwordx2 s[12:13], s[0:1], 80
        v_mov_b32 v4, v0
        s_waitcnt lgkmcnt(0)
        """)
        srd(g, S_WS, 12, WS_BYTES)
        g(f"""
        v_mov_b32 v2, s92
        v_mov_b32 v3, s94
        s_lshl_b32 s61, s2, 4
        s_add_u32 s61, s61, {57 << 20}
        v_cmp_eq_u32 vcc, 0, v4
        s_and_saveexec_b64 s[62:63], vcc
        s_cbranch_execz K2_END3
        v_mov_b32 v4, 0
        buffer_store_dwordx2 v[2:3], v4, s[{S_WS}:{S_WS+3}], s61 offen
        """)
        g.label("K2_END3")
    g("s_endpgm")


def dump_lds(g, lds_off, nbytes, ws_off):
    lab = g.newlabel("dump")
    g(f"""
    s_barrier
    s_lshl_b32 s59, s2, 18
    s_add_u32 s59, s59, {ws_off}
    v_lshlrev_b32 v4, 2, v0
    v_add_u32 v5, {lds_off}, v4
    s_mov_b32 s60, 0
    """)
    g.label(lab)
    g(f"""
    v_add_u32 v6, s60, v5
    v_add_u32 v7, s60, v4
    ds_read_b32 v8, v6
    s_waitcnt lgkmcnt(0)
    buffer_store_dword v8, v7, s[{S_WS}:{S_WS+3}], s59 offen
    s_add_u32 s60, s60, 2048
    s_cmp_lt_u32 s60, {nbytes}
    s_cbranch_scc1 {lab}
    """)


if __name__ == "__main__":
    dbg = sys.argv[2] if len(sys.argv) > 2 else None
    out = sys.argv[1] if len(sys.argv) > 1 else "k.s"
    open(out, "w").write(build(lambda g: k2(g, dbg), k2_lds=163840))
    print("wrote", out)
```

```python
import sys
from asmlib import Gen

N, E, D = 12500, 400000, 128
NB, BN = 250, 50
P, C = 250, 1600
TABP = 256
NG = 7

OFF_B = 0
OFF_AT = OFF_B + N * 256
OFF_P16 = OFF_AT + NB * NG * 2048
OFF_P4 = OFF_P16 + E * 16
OFF_TAB = OFF_P4 + E * 4
OFF_WHF = OFF_TAB + NB * TABP * 4
OFF_WF5 = OFF_WHF + 65536
WS_END = OFF_WF5 + 2048
WS_BYTES = 268435456

C1 = 0xBFB8AA3B
NLN2 = 0xBF317218

K1 = "egnn_prep_kernel"
K2 = "standalone__cheap_equivariant_egnn__graph_kernel"


def srd(g, s, lo, nbytes):
    g(f"""
    s_mov_b32 s{s}, s{lo}
    s_mov_b32 s{s+1}, s{lo+1}
    s_mov_b32 s{s+2}, {nbytes}
    s_mov_b32 s{s+3}, 0x00020000
    """)


import os
RT = os.environ.get("RTSTAMP") == "1"
K1T = os.environ.get("K1TIME") == "1"
def st1(g, k):
    if K1T:
        g(f"""
        s_memtime s[98:99]
        s_waitcnt lgkmcnt(0)
        v_writelane_b32 v255, s98, {k}
        """)
def k1(g):
    S_H, S_POS, S_EA, S_SRC, S_DST, S_WE, S_WH, S_WS = 20, 24, 28, 32, 36, 40, 44, 48
    g.label(K1)
    if RT: g("s_memrealtime s[90:91]")
    g(f"""
    s_cmp_ge_u32 s2, {2 * NB + 1}
    s_cbranch_scc1 K1_EXIT
    s_load_dwordx2 s[4:5], s[0:1], 0
    s_load_dwordx2 s[6:7], s[0:1], 8
    s_load_dwordx2 s[8:9], s[0:1], 16
    s_load_dwordx2 s[10:11], s[0:1], 24
    s_load_dwordx2 s[12:13], s[0:1], 32
    s_load_dwordx2 s[14:15], s[0:1], 40
    s_load_dwordx2 s[16:17], s[0:1], 56
    s_load_dwordx2 s[18:19], s[0:1], 80
    v_and_b32 v1, 63, v0              ; lane
    v_lshrrev_b32 v2, 6, v0           ; wave
    v_readfirstlane_b32 s60, v2
    s_waitcnt lgkmcnt(0)
    """)
    st1(g, 0)
    srd(g, S_H, 4, N * 256)
    srd(g, S_POS, 6, N * 6)
    srd(g, S_EA, 8, E * 8)
    srd(g, S_SRC, 10, E * 4)
    srd(g, S_DST, 12, E * 4)
    srd(g, S_WE, 14, 261 * 256)
    srd(g, S_WH, 16, 256 * 256)
    srd(g, S_WS, 18, WS_BYTES)
    g(f"""
    s_cmp_lt_u32 s2, {NB}
    s_cbranch_scc1 K1_PART
    s_cmp_lt_u32 s2, {2 * NB}
    s_cbranch_scc1 K1_GEMM
    s_branch K1_WPREP
    """)

    R = 4
    vD = lambda r: 8 + r
    vS = lambda r: 12 + r
    vEA = lambda r: 16 + 2 * r
    vB = lambda r: 24 + r
    vL = lambda r: 28 + r
    vRk = lambda r: 32 + r
    vPD = lambda r: 36 + 2 * r
    vPS = lambda r: 44 + 2 * r
    L_HIST, L_STA, L_POS = 0, 1024, 2048
    L_S16, L_S4 = 2048, 27648
    g.label("K1_PART")
    g(f"""
    s_mul_i32 s61, s2, {C}            ; e0
    v_lshlrev_b32 v3, 2, v0           ; tid*4
    v_lshlrev_b32 v4, 4, v0           ; tid*16
    v_lshlrev_b32 v5, 5, v0           ; tid*32
    v_mov_b32 v6, 0
    s_movk_i32 s70, {C // 4}
    v_cmp_gt_u32 s[64:65], s70, v0
    s_lshl_b32 s66, s61, 2            ; e0*4
    s_lshl_b32 s67, s61, 3            ; e0*8
    s_mov_b64 exec, s[64:65]
    buffer_load_dwordx4 v[{vD(0)}:{vD(3)}], v4, s[{S_DST}:{S_DST+3}], s66 offen
    buffer_load_dwordx4 v[{vS(0)}:{vS(3)}], v4, s[{S_SRC}:{S_SRC+3}], s66 offen
    buffer_load_dwordx4 v[{vEA(0)}:{vEA(0)+3}], v5, s[{S_EA}:{S_EA+3}], s67 offen
    buffer_load_dwordx4 v[{vEA(2)}:{vEA(2)+3}], v5, s[{S_EA}:{S_EA+3}], s67 offen offset:16
    s_mov_b64 exec, -1
    v_lshlrev_b32 v7, 4, v1           ; lane*16
    s_lshl_b32 s68, s60, 10
    """)
    for i in range(10):
        lab = g.newlabel("K1_pd")
        if i == 9:
            g(f"""
            s_cmp_ge_u32 s60, {74 - 72}
            s_cbranch_scc1 {lab}
            """)
        g(f"""
        s_add_u32 s69, s68, {8192 * i}
        s_add_u32 m0, s69, {L_POS}
        buffer_load_dwordx4 v7, s[{S_POS}:{S_POS+3}], s69 offen lds
        """)
        if i == 9: g.label(lab)
    g(f"""
    v_cmp_gt_u32 vcc, 256, v0
    s_and_saveexec_b64 s[62:63], vcc
    ds_write_b32 v3, v6 offset:{L_HIST}
    s_mov_b64 exec, s[62:63]
    s_waitcnt lgkmcnt(0)
    s_barrier
    s_mov_b64 exec, s[64:65]
    v_mov_b32 v6, 1
    s_cmp_lt_u32 s60, {74 - 72}
    s_cselect_b32 s71, 13, 12
    s_waitcnt vmcnt(12)
    """)
    st1(g, 1)
    for r in range(R):
        g(f"""
        v_mul_u32_u24 v7, 5243, v{vD(r)}
        v_lshrrev_b32 v{vB(r)}, 18, v7
        v_mul_u32_u24 v7, 50, v{vB(r)}
        v_sub_u32 v{vL(r)}, v{vD(r)}, v7
        v_lshlrev_b32 v7, 2, v{vB(r)}
        ds_add_rtn_u32 v{vRk(r)}, v7, v6 offset:{L_HIST}
        """)
    g("""
    s_mov_b64 exec, -1
    s_waitcnt vmcnt(0) lgkmcnt(0)
    s_barrier
    """)
    st1(g, 2)
    g("s_mov_b64 exec, s[64:65]")
    g(f"v_mov_b32 v116, {L_POS}")
    for r in range(R):
        g(f"""
        v_mad_u32_u24 v7, v{vD(r)}, 6, v116
        v_and_b32 v7, 0xfffffffc, v7
        ds_read2_b32 v[{vPD(r)}:{vPD(r)+1}], v7 offset1:1
        v_mad_u32_u24 v7, v{vS(r)}, 6, v116
        v_and_b32 v7, 0xfffffffc, v7
        ds_read2_b32 v[{vPS(r)}:{vPS(r)+1}], v7 offset1:1
        """)
    g(f"""
    s_mov_b64 exec, -1
    s_cmp_lg_u32 s60, 0
    s_cbranch_scc1 K1_SCANDONE
    v_lshlrev_b32 v100, 4, v1
    ds_read_b128 v[104:107], v100 offset:{L_HIST}
    s_waitcnt lgkmcnt(0)
    v_add_u32 v108, v104, v105        ; c0+c1
    v_add_u32 v109, v108, v106        ; +c2
    v_add_u32 v110, v109, v107
    v_mov_b32 v111, v110
    v_add_u32_dpp v111, v111, v111 row_shr:1 row_mask:0xf bank_mask:0xf bound_ctrl:0
    v_add_u32_dpp v111, v111, v111 row_shr:2 row_mask:0xf bank_mask:0xf bound_ctrl:0
    v_add_u32_dpp v111, v111, v111 row_shr:4 row_mask:0xf bank_mask:0xf bound_ctrl:0
    v_add_u32_dpp v111, v111, v111 row_shr:8 row_mask:0xf bank_mask:0xf bound_ctrl:0
    v_add_u32_dpp v111, v111, v111 row_bcast:15 row_mask:0xa bank_mask:0xf
    v_add_u32_dpp v111, v111, v111 row_bcast:31 row_mask:0xc bank_mask:0xf
    v_sub_u32 v112, v111, v110        ; exclusive
    v_add_u32 v113, v112, v104
    v_add_u32 v114, v112, v108
    v_add_u32 v115, v112, v109
    ds_write_b128 v100, v[112:115] offset:{L_STA}
    """)
    g.label("K1_SCANDONE")
    g("""
    s_waitcnt lgkmcnt(0)
    s_barrier
    """)
    st1(g, 3)
    g(f"""
    v_cmp_gt_u32 vcc, {NB}, v0
    s_and_saveexec_b64 s[62:63], vcc
    s_cbranch_execz K1_NOTAB
    ds_read_b32 v100, v3 offset:{L_HIST}
    ds_read_b32 v101, v3 offset:{L_STA}
    v_lshlrev_b32 v102, 10, v0        ; tid*1024
    s_lshl_b32 s68, s2, 2
    s_add_u32 s68, s68, {OFF_TAB}
    s_waitcnt lgkmcnt(0)
    v_lshl_or_b32 v100, v100, 16, v101
    buffer_store_dword v100, v102, s[{S_WS}:{S_WS+3}], s68 offen
    """)
    g.label("K1_NOTAB")
    g("s_mov_b64 exec, s[64:65]")
    for r in range(R):
        g(f"""
        v_lshlrev_b32 v7, 2, v{vB(r)}
        ds_read_b32 v{vB(r)}, v7 offset:{L_STA}
        """)
    g(f"s_mov_b32 s70, 0x{C1:08x}")
    g("s_waitcnt lgkmcnt(0)")
    st1(g, 4)
    for r in range(R):
        pd, ps = vPD(r), vPS(r)
        g(f"""
        v_add_u32 v{vRk(r)}, v{vB(r)}, v{vRk(r)}
        v_and_b32 v7, 1, v{vD(r)}
        v_lshlrev_b32 v7, 4, v7
        v_lshrrev_b64 v[{pd}:{pd+1}], v7, v[{pd}:{pd+1}]
        v_and_b32 v7, 1, v{vS(r)}
        v_lshlrev_b32 v7, 4, v7
        v_lshrrev_b64 v[{ps}:{ps+1}], v7, v[{ps}:{ps+1}]
        v_lshlrev_b32 v100, 16, v{pd}                  ; xd
        v_and_b32 v101, 0xffff0000, v{pd}              ; yd
        v_lshlrev_b32 v102, 16, v{pd+1}                ; zd
        v_lshlrev_b32 v103, 16, v{ps}
        v_and_b32 v104, 0xffff0000, v{ps}
        v_lshlrev_b32 v105, 16, v{ps+1}
        v_sub_f32 v100, v100, v103                     ; dx
        v_sub_f32 v101, v101, v104                     ; dy
        v_sub_f32 v102, v102, v105                     ; dz
        v_cvt_pk_bf16_f32 v111, v101, v102
        v_cvt_pk_bf16_f32 v103, v100, v100
        v_lshlrev_b32 v100, 16, v103                   ; dxr
        v_lshlrev_b32 v101, 16, v111                   ; dyr
        v_and_b32 v102, 0xffff0000, v111               ; dzr
        v_mul_f32 v103, v100, v100
        v_mul_f32 v104, v101, v101
        v_mul_f32 v105, v102, v102
        v_cvt_pk_bf16_f32 v103, v103, v104
        v_cvt_pk_bf16_f32 v105, v105, v105             ; sz
        v_lshlrev_b32 v104, 16, v103
        v_and_b32 v103, 0xffff0000, v103
        v_lshlrev_b32 v105, 16, v105
        v_add_f32 v103, v104, v103
        v_add_f32 v103, v103, v105                     ; d2 (f32)
        v_cvt_pk_bf16_f32 v103, v103, v103
        v_lshlrev_b32 v103, 16, v103
        v_mul_f32 v103, s70, v103                      ; c1*d2
        v_cvt_pk_bf16_f32 v110, v103, v100
        v_lshlrev_b32 v103, 16, v{vEA(r)}
        v_and_b32 v104, 0xffff0000, v{vEA(r)}
        v_lshlrev_b32 v105, 16, v{vEA(r)+1}
        v_and_b32 v106, 0xffff0000, v{vEA(r)+1}
        v_mul_f32 v103, s70, v103
        v_mul_f32 v104, s70, v104
        v_mul_f32 v105, s70, v105
        v_mul_f32 v106, s70, v106
        v_cvt_pk_bf16_f32 v108, v103, v104
        v_cvt_pk_bf16_f32 v109, v105, v106
        v_lshlrev_b32 v7, 4, v{vRk(r)}
        ds_write_b128 v7, v[108:111] offset:{L_S16}
        v_lshl_or_b32 v106, v{vS(r)}, 8, v{vL(r)}
        v_lshlrev_b32 v7, 2, v{vRk(r)}
        ds_write_b32 v7, v106 offset:{L_S4}
        """)
    g(f"""
    s_mov_b64 exec, -1
    s_waitcnt lgkmcnt(0)
    s_barrier
    s_lshl_b32 s68, s61, 4
    s_add_u32 s68, s68, {OFF_P16}
    s_add_u32 s69, s66, {OFF_P4}
    ds_read_b128 v[8:11], v4 offset:{L_S16}
    ds_read_b128 v[12:15], v4 offset:{L_S16 + 8192}
    ds_read_b128 v[16:19], v4 offset:{L_S16 + 16384}
    ds_read_b128 v[20:23], v4 offset:{L_S16 + 24576}
    ds_read_b128 v[24:27], v4 offset:{L_S4}
    s_waitcnt lgkmcnt(0)
    buffer_store_dwordx4 v[8:11], v4, s[{S_WS}:{S_WS+3}], s68 offen
    s_add_u32 s68, s68, 8192
    buffer_store_dwordx4 v[12:15], v4, s[{S_WS}:{S_WS+3}], s68 offen
    s_add_u32 s68, s68, 8192
    buffer_store_dwordx4 v[16:19], v4, s[{S_WS}:{S_WS+3}], s68 offen
    s_add_u32 s68, s68, 8192
    v_cmp_gt_u32 vcc, 64, v0
    s_mov_b64 exec, vcc
    buffer_store_dwordx4 v[20:23], v4, s[{S_WS}:{S_WS+3}], s68 offen
    s_mov_b64 exec, s[64:65]
    buffer_store_dwordx4 v[24:27], v4, s[{S_WS}:{S_WS+3}], s69 offen
    s_mov_b64 exec, -1
    s_branch K1_END
    """)

    vWF = lambda s, d: 8 + 4 * s + d
    vHF = lambda s: 40 + 4 * s
    vAC = lambda rt: 72 + 16 * rt
    vHA = lambda s: 104 + s
    g.label("K1_GEMM")
    g(f"""
    s_sub_u32 s61, s2, {NB}           ; bucket
    s_lshr_b32 s62, s60, 2            ; part
    s_and_b32 s63, s60, 3             ; t
    v_and_b32 v2, 31, v1              ; n / m
    v_lshrrev_b32 v3, 5, v1
    v_lshrrev_b32 v4, 4, v1           ; q4
    v_and_b32 v5, 15, v1              ; c'
    v_lshlrev_b32 v6, 2, v4
    v_xor_b32 v6, v6, v5
    v_lshlrev_b32 v6, 4, v6
    v_lshl_add_u32 v6, v4, 8, v6      ; q4*256 + ((c' ^ 4q4) << 4)
    s_lshl_b32 s64, s60, 13           ; 8w*1024
    """)
    for j in range(8):
        g(f"""
        s_add_u32 m0, s64, {1024 * j}
        buffer_load_dwordx4 v6, s[{S_WE}:{S_WE+3}], m0 offen lds
        """)
    g(f"""
    s_mul_i32 s65, s61, {BN}
    s_lshl_b32 s66, s60, 3            ; 8w = 4*(2w)
    v_add_u32 v7, s66, v4             ; row = 8w + q4 (+4)
    """)
    for i in range(2):
        g(f"""
        v_add_u32 v100, {4 * i}, v7
        v_and_b32 v101, 15, v100
        v_xor_b32 v101, v101, v5
        v_add_u32 v100, s65, v100
        v_lshlrev_b32 v100, 8, v100
        v_lshl_add_u32 v100, v101, 4, v100
        s_lshl_b32 s67, s60, 11
        s_add_u32 m0, s67, {65536 + 1024 * i}
        buffer_load_dwordx4 v100, s[{S_H}:{S_H+3}], 0 offen lds
        """)
    g(f"""
    v_and_b32 v100, 15, v2            ; m&15
    v_lshlrev_b32 v101, 8, v2         ; m*256
    v_add_u32 v101, 0x10000, v101
    """)
    for s_ in range(8):
        g(f"""
        v_add_u32 v102, {2 * s_}, v3
        v_xor_b32 v102, v102, v100
        v_lshl_add_u32 v{vHA(s_)}, v102, 4, v101
        """)
    g(f"""
    v_bfe_u32 v100, v1, 2, 2          ; r'
    v_and_b32 v101, 3, v1             ; c
    v_bfe_u32 v102, v1, 4, 1          ; G&1
    v_lshrrev_b32 v103, 1, v101       ; c>>1
    v_lshl_add_u32 v103, v102, 1, v103
    s_lshl_b32 s64, s63, 2
    v_add_u32 v103, s64, v103         ; chunk16
    v_lshlrev_b32 v102, 2, v100
    v_xor_b32 v103, v103, v102
    v_lshlrev_b32 v103, 4, v103
    v_and_b32 v101, 1, v101
    v_lshl_add_u32 v103, v101, 3, v103
    v_lshl_add_u32 v100, v3, 3, v100  ; 8kh + r'
    s_lshl_b32 s64, s62, 7
    v_add_u32 v100, s64, v100
    v_lshl_add_u32 v112, v100, 8, v103
    s_mov_b32 s70, 0x{C1:08x}
    s_waitcnt vmcnt(0)
    s_barrier
    """)
    st1(g, 1)
    for s_ in range(8):
        for u in range(2):
            g(f"ds_read_b64_tr_b16 v[{vWF(s_, 2*u)}:{vWF(s_, 2*u)+1}], v112 offset:{4096 * s_ + 1024 * u}")
        if s_ == 3: g("s_waitcnt lgkmcnt(4)")
    for rt in range(2):
        for s_ in range(8):
            g(f"ds_read_b128 v[{vHF(s_)}:{vHF(s_)+3}], v{vHA(s_)} offset:{8192 * rt}")
        g("s_waitcnt lgkmcnt(0)")
        lab = g.newlabel("K1_gB")
        lab2 = g.newlabel("K1_gJ")
        g(f"""
        s_cmp_lg_u32 s62, 0
        s_cbranch_scc1 {lab}
        """)
        for s_ in range(8):
            c = f"v[{vAC(rt)}:{vAC(rt)+15}]" if s_ else "0"
            g(f"v_mfma_f32_32x32x16_bf16 v[{vAC(rt)}:{vAC(rt)+15}], v[{vHF(s_)}:{vHF(s_)+3}], v[{vWF(s_, 0)}:{vWF(s_, 0)+3}], {c}")
        g(f"s_branch {lab2}")
        g.label(lab)
        for s_ in range(8):
            c = f"v[{vAC(rt)}:{vAC(rt)+15}]" if s_ else "0"
            g(f"v_mfma_f32_32x32x16_bf16 v[{vAC(rt)}:{vAC(rt)+15}], v[{vWF(s_, 0)}:{vWF(s_, 0)+3}], v[{vHF(s_)}:{vHF(s_)+3}], {c}")
        g.label(lab2)
    st1(g, 2)
    g(f"""
    s_cmp_lg_u32 s62, 0
    s_cbranch_scc1 K1_GEMM_B
    v_lshlrev_b32 v4, 4, v2
    v_lshlrev_b32 v5, 3, v3
    v_add_u32 v4, v4, v5
    s_lshl_b32 s64, s63, 9            ; 32t*16
    v_add_u32 v4, s64, v4
    """)
    for rt in range(2):
        for u in range(4):
            grp = 4 * rt + u
            if grp >= NG:
                continue
            a = vAC(rt) + 4 * u
            g(f"""
            v_mul_f32 v{a}, s70, v{a}
            v_mul_f32 v{a+1}, s70, v{a+1}
            v_mul_f32 v{a+2}, s70, v{a+2}
            v_mul_f32 v{a+3}, s70, v{a+3}
            v_cvt_pk_bf16_f32 v{a}, v{a}, v{a+1}
            v_cvt_pk_bf16_f32 v{a+1}, v{a+2}, v{a+3}
            s_mul_i32 s66, s61, {NG * 2048}
            s_add_u32 s66, s66, {OFF_AT + grp * 2048}
            buffer_store_dwordx2 v[{a}:{a+1}], v4, s[{S_WS}:{S_WS+3}], s66 offen
            """)
    g("s_branch K1_END")
    g.label("K1_GEMM_B")
    g(f"""
    v_cmp_gt_u32 s[72:73], {BN - 32}, v2
    v_lshlrev_b32 v5, 3, v3                      ; 8*hf
    v_add_u32 v113, s65, v2
    v_lshlrev_b32 v113, 8, v113
    v_add_u32 v113, v113, v5
    s_lshl_b32 s64, s63, 6                       ; 32t*2
    s_add_u32 s64, s64, {OFF_B}
    """)
    for rt in range(2):
        if rt:
            g(f"""
            v_add_u32 v113, 8192, v113
            s_mov_b64 exec, s[72:73]
            """)
        for u in range(4):
            a = vAC(rt) + 4 * u
            g(f"""
            v_mul_f32 v{a}, s70, v{a}
            v_mul_f32 v{a+1}, s70, v{a+1}
            v_mul_f32 v{a+2}, s70, v{a+2}
            v_mul_f32 v{a+3}, s70, v{a+3}
            v_cvt_pk_bf16_f32 v{a}, v{a}, v{a+1}
            v_cvt_pk_bf16_f32 v{a+1}, v{a+2}, v{a+3}
            buffer_store_dwordx2 v[{a}:{a+1}], v113, s[{S_WS}:{S_WS+3}], s64 offen offset:{16 * u}
            """)
    g("s_mov_b64 exec, -1")
    g("s_branch K1_END")

    g.label("K1_WPREP")
    g(f"""
    v_and_b32 v2, 31, v1
    v_lshrrev_b32 v3, 5, v1
    v_lshlrev_b32 v4, 11, v3          ; 8*kh*256
    v_lshlrev_b32 v5, 1, v2
    v_add_u32 v4, v4, v5              ; + n*2
    v_lshlrev_b32 v6, 4, v1           ; lane*16
    """)
    g(f"""
    s_lshr_b32 s61, s60, 1            ; t
    s_and_b32 s62, s60, 1
    s_lshl_b32 s62, s62, 3            ; 8*(w&1)
    s_lshl_b32 s63, s61, 6            ; 32t*2
    v_add_u32 v4, s63, v4
    s_lshl_b32 s64, s62, 12           ; s0*16*256
    s_lshl_b32 s65, s60, 13           ; 8w*1024
    s_add_u32 s65, s65, {OFF_WHF}
    """)
    for i in range(8):
        for j in range(8):
            g(f"buffer_load_ushort v{64 + 8*i + j}, v4, s[{S_WH}:{S_WH+3}], s64 offen offset:{j * 256}")
        g("s_add_u32 s64, s64, 4096")
    g(f"""
    s_cmp_gt_u32 s60, 1
    s_cbranch_scc1 K1_W_NOF5
    s_lshl_b32 s66, s60, 7            ; 64w*2
    v_lshlrev_b32 v40, 1, v1
    v_add_u32 v40, s66, v40
    """)
    g("s_mov_b32 s67, 65536")
    for k in range(5):
        g(f"buffer_load_ushort v{41 + k}, v40, s[{S_WE}:{S_WE+3}], s67 offen offset:{256 * k}")
    g(f"""
    s_mov_b32 s70, 0x{C1:08x}
    s_waitcnt vmcnt(0)
    """)
    for k in range(5):
        g(f"v_lshlrev_b32 v{41+k}, 16, v{41+k}")
    g(f"""
    v_mov_b32 v46, 0
    v_cvt_pk_bf16_f32 v48, v42, v43
    v_cvt_pk_bf16_f32 v49, v44, v45
    v_cvt_pk_bf16_f32 v50, v41, v46
    v_mov_b32 v51, 0
    s_lshl_b32 s66, s60, 10           ; 64w*16
    s_add_u32 s66, s66, {OFF_WF5}
    buffer_store_dwordx4 v[48:51], v6, s[{S_WS}:{S_WS+3}], s66 offen
    """)
    g.label("K1_W_NOF5")
    g("s_waitcnt vmcnt(0)")
    for i in range(8):
        for d in range(4):
            g(f"v_lshl_or_b32 v{8 + 4*i + d}, v{64 + 8*i + 2*d + 1}, 16, v{64 + 8*i + 2*d}")
    for i in range(8):
        g(f"buffer_store_dwordx4 v[{8+4*i}:{11+4*i}], v6, s[{S_WS}:{S_WS+3}], s65 offen offset:{1024 * i}" if i < 4 else
          f"buffer_store_dwordx4 v[{8+4*i}:{11+4*i}], v7, s[{S_WS}:{S_WS+3}], s65 offen offset:{1024 * (i - 4)}")
        if i == 3:
            g("v_add_u32 v7, 4096, v6")
    g.label("K1_END")
    if K1T:
        g("s_mov_b64 exec, -1")
        st1(g, 6)
        g("s_waitcnt vmcnt(0)")
        st1(g, 7)
        g(f"""
        s_cmp_ge_u32 s2, 501
        s_cbranch_scc1 K1_END9
        v_and_b32 v1, 63, v0
        v_lshlrev_b32 v4, 2, v1
        s_lshl_b32 s59, s2, 3
        s_add_u32 s59, s59, s60
        s_lshl_b32 s59, s59, 8
        s_add_u32 s59, s59, {48 << 20}
        buffer_store_dword v255, v4, s[48:51], s59 offen
        """)
        g.label("K1_END9")
    if RT:
        g(f"""
        s_mov_b64 exec, -1
        s_waitcnt vmcnt(0) lgkmcnt(0)
        s_memrealtime s[92:93]
        s_load_dwordx2 s[18:19], s[0:1], 80
        s_waitcnt lgkmcnt(0)
        """)
        srd(g, 48, 18, WS_BYTES)
        g(f"""
        v_mov_b32 v2, s90
        v_mov_b32 v3, s92
        s_lshl_b32 s61, s2, 4
        s_add_u32 s61, s61, {56 << 20}
        v_cmp_eq_u32 vcc, 0, v0
        s_and_saveexec_b64 s[62:63], vcc
        s_cbranch_execz K1_END2
        v_mov_b32 v4, 0
        buffer_store_dwordx2 v[2:3], v4, s[48:51], s61 offen
        """)
        g.label("K1_END2")
    g.label("K1_EXIT")
    g("s_endpgm")


def kd(name, vgpr, sgpr=102):
    if K1T and name == K1: vgpr = 256
    return f""".amdhsa_kernel {name}
  .amdhsa_next_free_vgpr {vgpr}
  .amdhsa_next_free_sgpr {sgpr}
  .amdhsa_accum_offset {vgpr}
  .amdhsa_group_segment_fixed_size 0
  .amdhsa_kernarg_size 88
  .amdhsa_user_sgpr_count 2
  .amdhsa_user_sgpr_kernarg_segment_ptr 1
  .amdhsa_system_sgpr_workgroup_id_x 1
.end_amdhsa_kernel
"""


def header():
    ref = open("standalone__cheap_equivariant_egnn__graph.s.ref").read()
    return ref.split("; Override launch geometry")[0]


def build(k2fn=None, k2_lds=0, k2_grid=250):
    txt = header()
    txt += f"; @launch kernel={K1} grid=({2 * NB + 1},1,1) block=(512,1,1) lds=81920\n"
    if k2fn:
        txt += f"; @launch kernel={K2} grid=({k2_grid},1,1) block=(512,1,1) lds={k2_lds}\n"
    txt += '.amdgcn_target "amdgcn-amd-amdhsa--gfx950"\n.text\n'
    g = Gen()
    k1(g)
    txt += f".globl {K1}\n.p2align 8\n.type {K1},@function\n" + g.finalize()
    if k2fn:
        g2 = Gen()
        k2fn(g2)
        txt += f".globl {K2}\n.p2align 8\n.type {K2},@function\n" + g2.finalize()
    txt += '.section .rodata,"a"\n.p2align 6\n' + kd(K1, 128)
    if k2fn:
        txt += ".p2align 6\n" + kd(K2, 256)
    return txt


if __name__ == "__main__":
    out = sys.argv[1] if len(sys.argv) > 1 else "k1.s"
    open(out, "w").write(build())
    print("wrote", out)
```

```python
from gen import *
import os
OPT = set(os.environ.get('K2OPT', '').split(','))

L_BST = 0
L_REC = 65536
CAPT = 63
CAP = CAPT * 32
L_META = L_REC + CAP * 16
L_SSC = L_META + CAP * 4
L_MACC = L_SSC + 8 * 2048
MROW = 528
L_AT = L_MACC + BN * MROW
L_LUT = L_AT + NG * 2048
L_GCNT = L_LUT + 128
L_GBASE = L_GCNT + 32
L_BLK = L_GBASE + 32
L_END = L_BLK + 512
assert L_END <= 163840, L_END
FASTMAX = CAP - NG * 31

vRD = lambda s: 4 + s
vCS = lambda j: 12 + j
vI0, vI1 = 20, 24
vWF = lambda t: 28 + 4 * t
vWX = lambda t: 44 + t
vSrd, vSwr, vSz, vMask, vOr, vMetaRd, vMe, vRecS, vRecF, vFl, vTinfo, vFlp = 48, 49, 50, 51, 52, 53, 54, 55, 56, 57, 58, 59
vZero4 = 60
vSeg = lambda t: 64 + 16 * t
vRow = lambda s: 128 + 4 * s
vZa, vZb, vT, vP = 160, 176, 192, 208
vF, vS = 216, 220
vMeta = lambda j: 228 + j
vMeV, vSv, vFaddr, vSwaddr = 236, 237, 238, 239
vTmp = lambda i: 240 + i
vSn = 244
vPay16 = lambda i: 64 + 4 * i
vPay4 = lambda i: 128 + i
vRank = lambda i: 144 + i

S_WS, S_H, S_OUT, S_POS, S_WX = 16, 20, 24, 28, 32
sW, sNB = 36, 37
sTE = lambda g: 38 + g
sT, sTau, sTau1, sG, sNV, sTn, sGn, sNVn, sHas = 46, 47, 48, 49, 50, 51, 52, 53, 54
sBST, sKH, sMHI = 55, 56, 58
sL31 = 14
sEndG = 45
sMaskSlot = lambda i: 64 + 2 * i


def onehot4(g, dst, vx, vlo, vhi):
    for d in range(4):
        g(f"""
        v_cmp_eq_u32 vcc, {2*d}, v{vx}
        v_cndmask_b32 v{dst+d}, 0, v{vlo}, vcc
        v_cmp_eq_u32 vcc, {2*d+1}, v{vx}
        v_cndmask_b32 v{dst+d}, v{dst+d}, v{vhi}, vcc
        """)


def mfma(g, d, a, b, c):
    if 'nomfma' in OPT and d < 200 and d != 72 and d != 88: return
    cs = "0" if c is None else f"v[{c}:{c+15}]"
    g(f"v_mfma_f32_32x32x16_bf16 v[{d}:{d+15}], v[{a}:{a+3}], v[{b}:{b+3}], {cs}")


def zmfma(g, t, z):
    mfma(g, z, vF, vWF(t), None)
    mfma(g, z, vRow(2 * t), vI0, z)
    mfma(g, z, vRow(2 * t + 1), vI1, z)


def silu(g, z, inject=None):
    inject = inject or {}
    if 'nosilu' in OPT:
        for i in range(8): g(f"v_cvt_pk_bf16_f32 v{vP+i}, v{z+2*i}, v{z+2*i+1}")
        for k in sorted(inject): inject[k](g)
        return
    ins = [f"v_exp_f32 v{vT+i}, v{z+i}" for i in range(16)]
    ins += [f"v_add_f32 v{vT+i}, 1.0, v{vT+i}" for i in range(16)]
    ins += [f"v_rcp_f32 v{vT+i}, v{vT+i}" for i in range(16)]
    ins += [f"v_mul_f32 v{vT+i}, v{z+i}, v{vT+i}" for i in range(16)]
    ins += [f"v_cvt_pk_bf16_f32 v{vP+i}, v{vT+2*i}, v{vT+2*i+1}" for i in range(8)]
    for k, l in enumerate(ins):
        if k in inject: inject[k](g)
        g(l)


def segmfma(g, t):
    mfma(g, vSeg(t), vS, vP, vSeg(t))
    mfma(g, vSeg(t), vS + 4, vP + 4, vSeg(t))


def prep_reads(g, st):
    g(f"""
    s_lshl_b32 s59, s{st}, 7
    s_lshl_b32 s60, s{st}, 9
    v_add_u32 v{vTmp(0)}, s59, v{vMetaRd}
    v_add_u32 v{vTmp(1)}, s59, v{vMe}
    v_add_u32 v{vTmp(2)}, s60, v{vRecS}
    ds_read_b128 v[{vMeta(0)}:{vMeta(3)}], v{vTmp(0)}
    ds_read_b128 v[{vMeta(4)}:{vMeta(7)}], v{vTmp(0)} offset:16
    ds_read_b32 v{vMeV}, v{vTmp(1)}
    ds_read_b32 v{vSv}, v{vTmp(2)}
    """)


def prep_zero(g):
    g(f"""
    ds_write_b128 v{vSz}, v[{vZero4}:{vZero4+3}]
    ds_write_b128 v{vSz}, v[{vZero4}:{vZero4+3}] offset:1024
    """)


def prep_issue(g, st, snv):
    for j in range(8):
        g(f"v_and_or_b32 v{vMeta(j)}, v{vMeta(j)}, s{sMHI}, v{vCS(j)}")
    for j in range(8):
        g(f"""
        s_add_u32 m0, s{sBST}, {1024 * j}
        buffer_load_dwordx4 v{vMeta(j)}, s[{S_WS}:{S_WS+3}], 0 offen lds
        """ if 'nodma' not in OPT else "")
    g(f"""
    v_and_b32 v{vTmp(0)}, 7, v{vMeV}                          ; slot
    s_mov_b32 s59, {L_LUT}
    v_lshl_add_u32 v{vTmp(1)}, v{vTmp(0)}, 4, s59
    s_lshl_b32 s60, s{st}, 9
    v_add_u32 v{vTmp(2)}, s60, v{vRecF}
    v_cndmask_b32 v{vFaddr}, v{vTmp(1)}, v{vTmp(2)}, s[{sKH}:{sKH+1}]
    v_lshl_add_u32 v{vSwaddr}, v{vTmp(0)}, 8, v{vSwr}
    v_and_or_b32 v{vSv}, v{vSv}, v{vMask}, v{vOr}
    v_cmp_gt_u32 vcc, s{snv}, v2
    s_mov_b64 exec, vcc
    ds_write_b16 v{vSwaddr}, v{vSv}
    ds_write_b16_d16_hi v{vSwaddr}, v{vSv} offset:64
    s_mov_b64 exec, -1
    """)


def load_wf(g, sg=None):
    sg = sG if sg is None else sg
    g(f"""
    s_lshl_b32 s59, s{sg}, 11
    s_add_u32 s59, s59, {L_AT}
    v_lshlrev_b32 v{vTmp(0)}, 4, v2
    v_add_u32 v{vTmp(0)}, s59, v{vTmp(0)}
    s_mov_b64 exec, 0xffffffff
    """)
    for t in range(4):
        g(f"ds_read_b128 v[{vWF(t)}:{vWF(t)+3}], v{vTmp(0)} offset:{512 * t}")
    g("s_mov_b64 exec, -1")


def flush_common(g):
    for i in range(4):
        for x in range(1, 4):
            d = vT + 3 * i + (x - 1)
            g(f"v_mul_f32 v{d}, v{vWX(0)}, v{vSeg(0) + 4*i + x}")
            for t in range(1, 4):
                g(f"v_fmac_f32 v{d}, v{vWX(t)}, v{vSeg(t) + 4*i + x}")
    for sh in (1, 2, 4, 8):
        for k in range(12):
            g(f"v_add_f32_dpp v{vT+k}, v{vT+k}, v{vT+k} row_shr:{sh} row_mask:0xf bank_mask:0xf bound_ctrl:0")
    for k in range(12):
        g(f"v_add_f32_dpp v{vT+k}, v{vT+k}, v{vT+k} row_bcast:15 row_mask:0xa bank_mask:0xf")


def flush_mid(g):
    flush_common(g)
    g(f"""
    s_mul_i32 s59, s{sG}, {8 * MROW}
    v_add_u32 v{vTmp(0)}, s59, v{vFl}
    v_add_u32 v{vTmp(1)}, s59, v{vFlp}
    """)
    pt = lambda k: (vP + k) if k < 8 else vMeta(k - 8)
    for t in range(4):
        for i in range(4):
            g(f"ds_read_b32 v{vZb + 4*t + i}, v{vTmp(0)} offset:{2 * i * MROW + 128 * t}")
            if 4 * t + i == 13: g("s_waitcnt lgkmcnt(6)")
    g(f"s_mov_b64 exec, s[{sL31}:{sL31+1}]")
    for i in range(4):
        for x in range(3):
            g(f"ds_read_b32 v{pt(3*i + x)}, v{vTmp(1)} offset:{2 * i * MROW + 512 + 4 * x}")
    g("s_waitcnt lgkmcnt(0)")
    for i in range(4):
        for x in range(3):
            g(f"v_add_f32 v{pt(3*i + x)}, v{pt(3*i + x)}, v{vT + 3*i + x}")
    for i in range(4):
        for x in range(3):
            g(f"ds_write_b32 v{vTmp(1)}, v{pt(3*i + x)} offset:{2 * i * MROW + 512 + 4 * x}")
    g("s_mov_b64 exec, -1")
    for t in range(4):
        for i in range(4):
            g(f"v_add_f32 v{vZb + 4*t + i}, v{vZb + 4*t + i}, v{vSeg(t) + 4*i}")
    g("s_waitcnt lgkmcnt(2)")
    for t in range(4):
        for i in range(4):
            g(f"ds_write_b32 v{vTmp(0)}, v{vZb + 4*t + i} offset:{2 * i * MROW + 128 * t}")


def flush_end(g):
    flush_common(g)
    g(f"""
    s_sub_u32 s59, s{sBST}, {L_MACC}
    v_add_u32 v{vTmp(0)}, s59, v{vFl}
    v_add_u32 v{vTmp(1)}, s59, v{vFlp}
    """)
    for t in range(4):
        for i in range(4):
            g(f"ds_write_b32 v{vTmp(0)}, v{vSeg(t) + 4*i} offset:{2 * i * MROW + 128 * t}")
    g(f"s_mov_b64 exec, s[{sL31}:{sL31+1}]")
    for i in range(4):
        for x in range(3):
            g(f"ds_write_b32 v{vTmp(1)}, v{vT + 3*i + x} offset:{2 * i * MROW + 512 + 4 * x}")
    g("s_mov_b64 exec, -1")


def stamp(g, k, on):
    if on:
        g(f"""
        s_memtime s[98:99]
        s_waitcnt lgkmcnt(0)
        v_writelane_b32 v255, s98, {k}
        """)


def istamp(g, k, on):
    if on and ISTAMP_ON:
        g(f"""
        s_memtime s[98:99]
        s_add_u32 s100, s101, {k}
        s_waitcnt lgkmcnt(0)
        s_mov_b32 m0, s100
        v_writelane_b32 v254, s98, m0
        """)


def k2(g, dbg=None):
    st = dbg == "time"
    global ISTAMP_ON
    ISTAMP_ON = 'noistamp' not in OPT
    g.label(K2)
    if RT: g("s_memrealtime s[92:93]")
    g(f"""
    s_cmp_ge_u32 s2, {NB}
    s_cbranch_scc1 K2_EXIT
    s_load_dwordx2 s[4:5], s[0:1], 0
    s_load_dwordx2 s[6:7], s[0:1], 8
    s_load_dwordx2 s[8:9], s[0:1], 48
    s_load_dwordx2 s[10:11], s[0:1], 64
    s_load_dwordx2 s[12:13], s[0:1], 80
    v_and_b32 v1, 63, v0
    v_and_b32 v2, 31, v1
    v_lshrrev_b32 v3, 5, v1
    v_lshrrev_b32 v192, 6, v0
    v_readfirstlane_b32 s{sW}, v192
    s_mul_i32 s{sNB}, s2, {BN}
    s_waitcnt lgkmcnt(0)
    """)
    if RT: g("v_mov_b32 v255, s92")
    stamp(g, 0, st)
    srd(g, S_H, 4, N * 256)
    srd(g, S_POS, 6, N * 6)
    srd(g, S_WX, 8, 256)
    srd(g, S_OUT, 10, 1637500 * 2)
    srd(g, S_WS, 12, WS_BYTES)
    vTt = lambda r: vTmp(1 + r)
    L_IDX = 0
    sF0, sTot, sNR = 4, 5, 6
    g(f"""
    s_lshl_b32 s59, s2, 10
    s_add_u32 s59, s59, {OFF_TAB}
    v_lshlrev_b32 v194, 2, v1                       ; lane*4
    v_lshlrev_b32 v195, 4, v1                       ; lane*16
    buffer_load_dword v{vTt(0)}, v194, s[{S_WS}:{S_WS+3}], s59 offen
    buffer_load_dword v{vTt(1)}, v194, s[{S_WS}:{S_WS+3}], s59 offen offset:256
    buffer_load_dword v{vTt(2)}, v194, s[{S_WS}:{S_WS+3}], s59 offen offset:512
    buffer_load_dword v{vTt(3)}, v194, s[{S_WS}:{S_WS+3}], s59 offen offset:768
    s_mul_i32 s61, s2, {NG * 2048}
    s_add_u32 s61, s61, {OFF_AT}
    s_lshl_b32 s62, s{sW}, 10
    s_add_u32 s63, s61, s62
    s_add_u32 m0, s62, {L_AT}
    buffer_load_dwordx4 v195, s[{S_WS}:{S_WS+3}], s63 offen lds
    s_cmp_ge_u32 s{sW}, {2 * NG - 8}
    s_cbranch_scc1 K2_noat2
    s_add_u32 s63, s63, 8192
    s_add_u32 m0, s62, {L_AT + 8192}
    buffer_load_dwordx4 v195, s[{S_WS}:{S_WS+3}], s63 offen lds
    """)
    g.label("K2_noat2")
    g(f"""
    v_lshlrev_b32 v193, 4, v2                       ; n*16
    s_mov_b32 s59, {OFF_WF5}
    """)
    for t in range(4):
        g(f"buffer_load_dwordx4 v[{vWF(t)}:{vWF(t)+3}], v193, s[{S_WS}:{S_WS+3}], s59 offen offset:{512 * t}")
    g("v_lshlrev_b32 v193, 1, v2")
    for t in range(4):
        g(f"buffer_load_ushort v{vWX(t)}, v193, s[{S_WX}:{S_WX+3}], 0 offen offset:{64 * t}")
    g(f"""
    s_lshl_b32 s{sBST}, s{sW}, 13
    s_mov_b32 s{sKH}, 0
    s_mov_b32 s{sKH+1}, -1
    s_mov_b32 s{sMHI}, 0xffffff00
    s_mov_b32 s{sL31}, 0x80000000
    s_mov_b32 s{sL31+1}, 0x80000000
    v_mov_b32 v{vZero4}, 0
    v_mov_b32 v{vZero4+1}, 0
    v_mov_b32 v{vZero4+2}, 0
    v_mov_b32 v{vZero4+3}, 0
    v_and_b32 v192, 7, v2
    v_lshlrev_b32 v192, 2, v192
    v_lshrrev_b32 v193, 3, v2
    v_add_u32 v192, v192, v193
    v_lshlrev_b32 v192, 8, v192
    v_add_u32 v192, s{sBST}, v192
    v_and_b32 v193, 15, v2                          ; m&15
    """)
    for s_ in range(8):
        g(f"""
        v_add_u32 v194, {2*s_}, v3
        v_xor_b32 v194, v194, v193
        v_lshl_add_u32 v{vRD(s_)}, v194, 4, v192
        """)
    g("""
    v_and_b32 v193, 15, v1
    v_bfe_u32 v194, v1, 4, 1
    v_lshlrev_b32 v194, 3, v194
    v_xor_b32 v193, v193, v194
    """)
    for j in range(8):
        g(f"""
        v_xor_b32 v194, {j}, v193
        v_lshlrev_b32 v{vCS(j)}, 4, v194
        """)
    g(f"""
    v_mov_b32 v196, 0x3f80
    v_mov_b32 v197, 0x3f800000
    v_lshlrev_b32 v192, 3, v3
    v_sub_u32 v192, v2, v192                          ; n - 8kh
    """)
    onehot4(g, vI0, 192, 196, 197)
    g("v_subrev_u32 v192, 16, v192")
    onehot4(g, vI1, 192, 196, 197)
    g(f"""
    s_lshl_b32 s59, s{sW}, 11
    s_add_u32 s59, s59, {L_SSC}
    v_lshlrev_b32 v192, 6, v2
    v_lshl_add_u32 v192, v3, 4, v192
    v_add_u32 v{vSrd}, s59, v192                    ; m*64 + kh*16
    v_lshlrev_b32 v192, 4, v1
    v_add_u32 v{vSz}, s59, v192
    v_lshrrev_b32 v192, 4, v2
    v_lshlrev_b32 v192, 5, v192
    v_bfe_u32 v193, v2, 2, 1
    v_lshl_add_u32 v192, v193, 4, v192
    v_bfe_u32 v193, v2, 3, 1
    v_lshl_add_u32 v192, v193, 3, v192
    v_and_b32 v193, 3, v2
    v_lshl_add_u32 v192, v193, 1, v192
    v_lshl_add_u32 v192, v3, 7, v192
    v_add_u32 v{vSwr}, s59, v192
    v_mov_b32 v192, 0xffff0000
    v_mov_b32 v193, -1
    v_cndmask_b32 v{vMask}, v192, v193, s[{sKH}:{sKH+1}]
    v_mov_b32 v193, 0
    v_cndmask_b32 v{vOr}, v196, v193, s[{sKH}:{sKH+1}]
    v_lshrrev_b32 v192, 4, v1
    v_lshlrev_b32 v192, 5, v192
    v_add_u32 v{vMetaRd}, {L_META}, v192
    v_lshlrev_b32 v192, 2, v2
    v_add_u32 v{vMe}, {L_META}, v192
    v_lshlrev_b32 v192, 4, v2
    v_add_u32 v{vRecF}, {L_REC}, v192
    v_lshlrev_b32 v193, 2, v3
    v_add3_u32 v{vRecS}, v{vRecF}, v193, 8
    v_mul_u32_u24 v192, {MROW}, v3
    v_add_u32 v{vFlp}, {L_MACC}, v192
    v_lshlrev_b32 v193, 2, v2
    v_add_u32 v{vFl}, v{vFlp}, v193
    """)
    g(f"""
    v_lshlrev_b32 v192, 4, v0
    v_add_u32 v192, {L_MACC}, v192
    ds_write_b128 v192, v[{vZero4}:{vZero4+3}]
    ds_write_b128 v192, v[{vZero4}:{vZero4+3}] offset:8192
    ds_write_b128 v192, v[{vZero4}:{vZero4+3}] offset:16384
    v_cmp_gt_u32 vcc, {(BN * MROW - 24576) // 16}, v0
    s_and_saveexec_b64 s[62:63], vcc
    s_cbranch_execz K2_z1
    ds_write_b128 v192, v[{vZero4}:{vZero4+3}] offset:24576
    """)
    g.label("K2_z1")
    g(f"""
    s_mov_b64 exec, s[62:63]
    s_cmp_lg_u32 s{sW}, 0
    s_cbranch_scc1 K2_z2
    """)
    onehot4(g, 204, 1, 196, 197)
    g(f"""
    v_cmp_gt_u32 vcc, 8, v1
    s_and_saveexec_b64 s[62:63], vcc
    v_lshlrev_b32 v192, 4, v1
    v_add_u32 v192, {L_LUT}, v192
    ds_write_b128 v192, v[204:207]
    s_mov_b64 exec, s[62:63]
    """)
    g.label("K2_z2")
    stamp(g, 1, st)
    g("s_waitcnt vmcnt(9)")
    stamp(g, 14, st)
    vCn = lambda r: 208 + r
    vSc = lambda r: 212 + r
    vOff, vCnt, vGb = 216, 217, 253
    for r in range(4):
        g(f"v_lshrrev_b32 v{vCn(r)}, 16, v{vTt(r)}")
    g(f"""
    v_cmp_gt_u32 vcc, {P - 192}, v1
    v_cndmask_b32 v{vCn(3)}, 0, v{vCn(3)}, vcc
    """)
    for r in range(4):
        g(f"v_mov_b32 v{vSc(r)}, v{vCn(r)}")
    for mod in ("row_shr:1 row_mask:0xf bank_mask:0xf bound_ctrl:0", "row_shr:2 row_mask:0xf bank_mask:0xf bound_ctrl:0",
                "row_shr:4 row_mask:0xf bank_mask:0xf bound_ctrl:0", "row_shr:8 row_mask:0xf bank_mask:0xf bound_ctrl:0",
                "row_bcast:15 row_mask:0xa bank_mask:0xf", "row_bcast:31 row_mask:0xc bank_mask:0xf"):
        for r in range(4):
            g(f"v_add_u32_dpp v{vSc(r)}, v{vSc(r)}, v{vSc(r)} {mod}")
    g(f"""
    v_readlane_b32 s59, v{vSc(0)}, 63
    v_readlane_b32 s60, v{vSc(1)}, 63
    v_readlane_b32 s61, v{vSc(2)}, 63
    v_readlane_b32 s62, v{vSc(3)}, 63
    s_add_u32 s60, s60, s59                         ; tot0+tot1
    s_add_u32 s61, s61, s60
    s_add_u32 s{sTot}, s62, s61
    v_mov_b32 v{vCnt}, 0
    v_mov_b32 v{vOff}, 0
    v_mov_b32 v{vGb}, 0
    """)
    for r in range(4):
        lab = g.newlabel("K2_sel")
        pre = ["0", "s59", "s60", "s61"][r]
        g(f"""
        s_cmp_lg_u32 s{sW}, {r}
        s_cbranch_scc1 {lab}
        v_mov_b32 v{vCnt}, v{vCn(r)}
        v_sub_u32 v{vOff}, v{vSc(r)}, v{vCn(r)}
        v_add_u32 v{vOff}, {pre}, v{vOff}
        v_add_u32 v192, {64 * r}, v1
        v_mul_u32_u24 v192, {C}, v192
        v_and_b32 v{vGb}, 0xffff, v{vTt(r)}
        v_add_u32 v{vGb}, v{vGb}, v192
        """)
        g.label(lab)
    g(f"v_lshl_or_b32 v252, v{vOff}, 11, v{vCnt}")
    g(f"s_mov_b32 s{sF0}, 0")
    stamp(g, 15, st)
    g.label("K2_ROUND")
    g(f"""
    s_mov_b32 s{sEndG}, 7
    s_sub_u32 s{sNR}, s{sTot}, s{sF0}
    s_min_u32 s{sNR}, s{sNR}, {FASTMAX}
    v_and_b32 v192, 7, v1
    v_lshlrev_b32 v192, 2, v192
    v_add_u32 v192, {L_GCNT}, v192
    ds_write_b32 v192, v{vZero4}
    v_lshrrev_b32 v{vOff}, 11, v252
    v_and_b32 v{vCnt}, 0x7ff, v252
    v_subrev_u32 v192, v{vOff}, v{vZero4}
    v_add_u32 v192, s{sF0}, v192
    v_med3_i32 v193, v192, 0, v{vCnt}               ; k0
    v_add_u32 v192, {FASTMAX}, v192
    v_med3_i32 v194, v192, 0, v{vCnt}               ; k1
    v_add_u32 v196, v{vOff}, v193
    v_subrev_u32 v196, s{sF0}, v196
    v_lshlrev_b32 v196, 2, v196
    v_add_u32 v197, v{vGb}, v193                    ; value
    """)
    g.label("K2_EXP")
    g(f"""
    v_cmp_lt_u32 vcc, v193, v194
    s_and_b64 exec, exec, vcc
    s_cbranch_execz K2_EXPD
    ds_write_b32 v196, v197 offset:{L_IDX}
    v_add_u32 v193, 1, v193
    v_add_u32 v196, 4, v196
    v_add_u32 v197, 1, v197
    s_branch K2_EXP
    """)
    g.label("K2_EXPD")
    g(f"""
    s_mov_b64 exec, -1
    s_waitcnt lgkmcnt(0)
    s_barrier
    v_lshlrev_b32 v192, 2, v0
    """)
    stamp(g, 2, st)
    NS = 4
    for j in range(NS):
        g(f"ds_read_b32 v{vRank(j)}, v192 offset:{L_IDX + 2048 * j}")
    g(f"""
    s_mov_b32 s59, {OFF_P16}
    s_mov_b32 s60, {OFF_P4}
    s_waitcnt lgkmcnt(0)
    """)
    for j in range(NS):
        mk = sMaskSlot(j)
        g(f"""
        s_sub_u32 s61, s{sNR}, {512 * j}
        s_max_i32 s61, s61, 0
        v_cmp_gt_u32 s[{mk}:{mk+1}], s61, v0
        v_lshlrev_b32 v196, 4, v{vRank(j)}
        v_lshlrev_b32 v197, 2, v{vRank(j)}
        s_mov_b64 exec, s[{mk}:{mk+1}]
        buffer_load_dword v{vPay4(j)}, v197, s[{S_WS}:{S_WS+3}], s60 offen
        buffer_load_dwordx4 v[{vPay16(j)}:{vPay16(j)+3}], v196, s[{S_WS}:{S_WS+3}], s59 offen
        s_mov_b64 exec, -1
        """)
    g(f"""
    v_mov_b32 v192, 1
    s_mov_b32 s59, {L_GCNT}
    """)
    for j in range(NS):
        mk = sMaskSlot(j)
        g(f"""
        s_waitcnt vmcnt({2 * (NS - 1 - j) + 1})
        v_bfe_u32 v193, v{vPay4(j)}, 3, 3
        v_lshl_add_u32 v193, v193, 2, s59
        s_mov_b64 exec, s[{mk}:{mk+1}]
        ds_add_rtn_u32 v{vRank(j)}, v193, v192
        s_mov_b64 exec, -1
        """)
    stamp(g, 16, st)
    g(f"""
    s_waitcnt lgkmcnt(0)
    s_barrier
    v_and_b32 v192, 7, v1
    v_lshlrev_b32 v192, 2, v192
    v_add_u32 v193, {L_GCNT}, v192
    ds_read_b32 v196, v193
    s_waitcnt lgkmcnt(0)
    """)
    stamp(g, 3, st)
    g("s_mov_b32 s96, 0")
    vVe, vBase = 198, 199
    for gi in range(NG):
        g(f"""
        v_readlane_b32 s97, v196, {gi}
        v_writelane_b32 v{vBase}, s96, {gi}
        s_add_u32 s98, s96, s97
        v_writelane_b32 v{vVe}, s98, {gi}
        s_add_u32 s96, s98, 31
        s_and_b32 s96, s96, 0xffffffe0
        s_lshr_b32 s{sTE(gi)}, s96, 5
        """)
    g(f"""
    s_mov_b32 s{sT}, s{sTE(NG-1)}
    v_cmp_gt_u32 vcc, 8, v1
    v_add_u32 v193, {L_GBASE}, v192
    s_mov_b64 exec, vcc
    ds_write_b32 v193, v{vBase}
    s_mov_b64 exec, -1
    v_mov_b32 v200, 0
    """)
    for gi in range(NG - 1):
        g(f"""
        v_cmp_le_u32 vcc, s{sTE(gi)}, v1
        v_addc_co_u32 v200, vcc, 0, v200, vcc
        """)
    g(f"""
    v_lshlrev_b32 v201, 2, v200
    ds_bpermute_b32 v201, v201, v{vVe}
    v_lshlrev_b32 v202, 5, v1
    s_mov_b32 s59, {L_GBASE}
    s_mov_b32 s60, {L_REC}
    s_mov_b32 s61, {L_META}
    """)
    vBs = lambda i: vZa + i
    for j in range(NS):
        g(f"""
        v_bfe_u32 v193, v{vPay4(j)}, 3, 3
        v_lshl_add_u32 v193, v193, 2, s59
        ds_read_b32 v{vBs(j)}, v193
        """)
    g(f"""
    s_waitcnt vmcnt(0) lgkmcnt(0)
    s_cmp_lg_u32 s{sF0}, 0
    s_cbranch_scc1 K2_nowx
    v_lshlrev_b32 v{vWX(0)}, 16, v{vWX(0)}
    v_lshlrev_b32 v{vWX(1)}, 16, v{vWX(1)}
    v_lshlrev_b32 v{vWX(2)}, 16, v{vWX(2)}
    v_lshlrev_b32 v{vWX(3)}, 16, v{vWX(3)}
    """)
    g.label("K2_nowx")
    g(f"""
    v_sub_u32 v201, v201, v202
    v_min_u32 v201, 32, v201
    v_lshl_or_b32 v{vTinfo}, v201, 8, v200
    """)
    for j in range(NS):
        mk = sMaskSlot(j)
        g(f"""
        v_add_u32 v194, v{vBs(j)}, v{vRank(j)}
        v_and_b32 v195, 0xffffff07, v{vPay4(j)}
        v_lshl_add_u32 v192, v194, 4, s60
        v_lshl_add_u32 v193, v194, 2, s61
        s_mov_b64 exec, s[{mk}:{mk+1}]
        ds_write_b128 v192, v[{vPay16(j)}:{vPay16(j)+3}]
        ds_write_b32 v193, v195
        s_mov_b64 exec, -1
        """)
    stamp(g, 17, st)
    g(f"""
    s_cmp_ge_u32 s{sW}, {NG}
    s_cbranch_scc1 K2_nopad
    v_readlane_b32 s96, v{vVe}, s{sW}
    s_add_u32 s97, s96, 31
    s_and_b32 s97, s97, 0xffffffe0
    v_add_u32 v194, s96, v1
    v_cmp_gt_u32 vcc, s97, v194
    s_and_saveexec_b64 s[62:63], vcc
    s_cbranch_execz K2_nopad2
    v_lshl_add_u32 v192, v194, 4, s60
    ds_write_b128 v192, v[{vZero4}:{vZero4+3}]
    v_lshl_add_u32 v192, v194, 2, s61
    ds_write_b32 v192, v{vZero4}
    """)
    g.label("K2_nopad2")
    g("s_mov_b64 exec, s[62:63]")
    g.label("K2_nopad")
    g(f"""
    s_waitcnt vmcnt(0) lgkmcnt(0)
    s_barrier
    """)
    stamp(g, 4, st)
    sH1, sH2, sG1, sNV2 = sHas, 61, sGn, sNVn
    def read_ops(g, sdst):
        for s_ in range(8):
            g(f"ds_read_b128 v[{vRow(s_)}:{vRow(s_)+3}], v{vRD(s_)}")
        g(f"""
        ds_read_b128 v[{vF}:{vF+3}], v{vFaddr}
        ds_read_b128 v[{sdst}:{sdst+3}], v{vSrd}
        ds_read_b128 v[{sdst+4}:{sdst+7}], v{vSrd} offset:32
        """)
    g(f"""
    s_mul_i32 s59, s{sT}, s{sW}
    s_lshr_b32 s{sTau}, s59, 3
    s_add_u32 s59, s59, s{sT}
    s_lshr_b32 s{sTau1}, s59, 3
    s_cmp_ge_u32 s{sTau}, s{sTau1}
    s_cbranch_scc1 K2_MAINDONE
    v_readlane_b32 s59, v{vTinfo}, s{sTau}
    s_and_b32 s{sG}, s59, 0xff
    s_lshr_b32 s{sNV}, s59, 8
    """)
    for r in range(64):
        g(f"v_mov_b32 v{vSeg(0) + r}, 0")
    load_wf(g)
    prep_reads(g, sTau)
    prep_zero(g)
    g("s_waitcnt lgkmcnt(0)")
    prep_issue(g, sTau, sNV)
    g("s_waitcnt vmcnt(0)")
    read_ops(g, vS)
    g(f"""
    s_add_u32 s{sTn}, s{sTau}, 1
    s_cmp_ge_u32 s{sTn}, s{sTau1}
    s_cbranch_scc1 K2_I1
    v_readlane_b32 s59, v{vTinfo}, s{sTn}
    s_lshr_b32 s{sNV}, s59, 8
    """)
    prep_reads(g, sTn)
    g("s_waitcnt lgkmcnt(4)")
    prep_zero(g)
    g("s_waitcnt lgkmcnt(2)")
    prep_issue(g, sTn, sNV)
    g.label("K2_I1")
    g("s_waitcnt lgkmcnt(0)")
    zmfma(g, 0, vZa)
    if st: g("s_mov_b32 s101, 0")
    g.label("K2_LOOP")
    istamp(g, 0, st)
    g(f"""
    s_add_u32 s{sTn}, s{sTau}, 1
    s_cmp_lt_u32 s{sTn}, s{sTau1}
    s_cselect_b32 s{sH1}, 1, 0
    s_min_u32 s59, s{sTn}, 63
    v_readlane_b32 s59, v{vTinfo}, s59
    s_add_u32 s62, s{sTau}, 2
    s_cmp_lt_u32 s62, s{sTau1}
    s_cselect_b32 s{sH2}, 1, 0
    s_min_u32 s62, s62, 63
    v_readlane_b32 s60, v{vTinfo}, s62
    s_and_b32 s{sG1}, s59, 0xff
    s_lshr_b32 s{sNV2}, s60, 8
    """)
    if 'noprio' not in OPT:
        g(f"""
        s_sub_u32 s62, s{sTau1}, s{sTau}
        s_cmp_ge_u32 s62, 6
        s_cbranch_scc1 K2_P3
        s_cmp_ge_u32 s62, 4
        s_cbranch_scc1 K2_P2
        s_cmp_ge_u32 s62, 2
        s_cbranch_scc1 K2_P1
        s_setprio 0
        s_branch K2_PD
        """)
        g.label("K2_P1")
        g("s_setprio 1")
        g("s_branch K2_PD")
        g.label("K2_P2")
        g("s_setprio 2")
        g("s_branch K2_PD")
        g.label("K2_P3")
        g("s_setprio 3")
        g.label("K2_PD")
    def zm(t, z, k):
        if k == 0: return lambda g: mfma(g, z, vF, vWF(t), None)
        if k == 1: return lambda g: mfma(g, z, vRow(2 * t), vI0, z)
        return lambda g: mfma(g, z, vRow(2 * t + 1), vI1, z)
    def sg(t, k):
        return (lambda g: mfma(g, vSeg(t), vS, vP, vSeg(t))) if k == 0 else (lambda g: mfma(g, vSeg(t), vS + 4, vP + 4, vSeg(t)))
    silu(g, vZa, {1: zm(1, vZb, 0), 5: zm(1, vZb, 1), 9: zm(1, vZb, 2)})
    istamp(g, 1, st)
    def inj_pr(g):
        lab = g.newlabel("K2_pr")
        g(f"""
        s_cmp_eq_u32 s{sH2}, 0
        s_cbranch_scc1 {lab}
        s_add_u32 s62, s{sTau}, 2
        """)
        prep_reads(g, 62)
        g.label(lab)
    silu(g, vZb, {1: sg(0, 0), 5: sg(0, 1), 9: zm(2, vZa, 0), 13: zm(2, vZa, 1), 33: zm(2, vZa, 2), 40: inj_pr})
    istamp(g, 2, st)
    def inj_b2(g):
        lab = g.newlabel("K2_b2")
        g(f"""
        s_cmp_eq_u32 s{sH1}, 0
        s_cbranch_scc1 {lab}
        s_waitcnt vmcnt(0)
        """)
        read_ops(g, vSn)
        g.label(lab)
    def inj_dma(g):
        lab = g.newlabel("K2_dm")
        g(f"""
        s_cmp_eq_u32 s{sH2}, 0
        s_cbranch_scc1 {lab}
        s_waitcnt lgkmcnt(0)
        """)
        prep_zero(g)
        g(f"s_add_u32 s62, s{sTau}, 2")
        prep_issue(g, 62, sNV2)
        g.label(lab)
    silu(g, vZa, {1: sg(1, 0), 5: sg(1, 1), 9: zm(3, vZb, 0), 13: zm(3, vZb, 1), 33: zm(3, vZb, 2), 44: inj_b2, 64: inj_dma})
    istamp(g, 3, st)
    g(f"""
    s_cmp_eq_u32 s{sH1}, 0
    s_cbranch_scc1 K2_B3C
    s_cmp_eq_u32 s{sG1}, s{sG}
    s_cbranch_scc1 K2_B3B
    """)
    load_wf(g, sG1)
    g.label("K2_B3B")
    g("s_waitcnt lgkmcnt(0)")
    zmfma(g, 0, vZa)
    g.label("K2_B3C")
    silu(g, vZb, {1: sg(2, 0), 5: sg(2, 1)})
    segmfma(g, 3)
    istamp(g, 4, st)
    g(f"""
    s_cmp_eq_u32 s{sH1}, 0
    s_cbranch_scc1 K2_FLEND
    """)
    for r in range(8):
        g(f"v_mov_b32 v{vS + r}, v{vSn + r}")
    g(f"""
    s_cmp_eq_u32 s{sG1}, s{sG}
    s_cbranch_scc1 K2_NEXT
    """)
    flush_mid(g)
    g(f"s_mov_b32 s{sG}, s{sG1}")
    for r in range(64):
        g(f"v_mov_b32 v{vSeg(0) + r}, 0")
    g.label("K2_NEXT")
    if st: g("s_add_u32 s101, s101, 5")
    g(f"""
    s_mov_b32 s{sTau}, s{sTn}
    s_branch K2_LOOP
    """)
    g.label("K2_FLEND")
    flush_end(g)
    g(f"s_mov_b32 s{sEndG}, s{sG}")
    stamp(g, 13, st)
    g.label("K2_MAINDONE")
    g("s_setprio 0")
    stamp(g, 5, st)
    g(f"""
    v_mov_b32 v{vTmp(0)}, s{sEndG}
    s_lshl_b32 s59, s{sW}, 2
    s_add_u32 s59, s59, {L_GBASE}
    v_mov_b32 v{vTmp(1)}, s59
    ds_write_b32 v{vTmp(1)}, v{vTmp(0)}
    """)
    vWh = lambda s: 64 + 4 * s
    vHf = lambda s: 128 + 4 * s
    vHr = lambda u: 160 + 2 * u
    vMf = lambda s: 168 + 4 * s
    vAcc = 200
    g(f"""
    s_add_u32 s7, s{sF0}, {FASTMAX}
    s_cmp_lt_u32 s7, s{sTot}
    s_cbranch_scc1 K2_NOEPI
    s_lshr_b32 s96, s{sW}, 2                        ; mt
    s_and_b32 s97, s{sW}, 3                         ; t
    v_lshlrev_b32 v4, 4, v1
    s_lshl_b32 s59, s97, 14
    s_add_u32 s59, s59, {OFF_WHF}
    """)
    for s in range(16):
        g(f"buffer_load_dwordx4 v[{vWh(s)}:{vWh(s)+3}], v4, s[{S_WS}:{S_WS+3}], s59 offen")
        if s < 15:
            g("s_add_u32 s59, s59, 1024")
    g(f"""
    s_lshl_b32 s59, s96, 5
    v_add_u32 v5, s59, v2
    v_add_u32 v6, s{sNB}, v5                        ; node
    v_lshlrev_b32 v6, 8, v6                         ; node*256
    v_lshl_add_u32 v7, v3, 4, v6
    """)
    for s in range(8):
        g(f"buffer_load_dwordx4 v[{vHf(s)}:{vHf(s)+3}], v7, s[{S_H}:{S_H+3}], 0 offen offset:{32 * s}")
    g(f"""
    v_lshl_add_u32 v7, v3, 3, v6
    s_lshl_b32 s60, s97, 6                          ; 64 t
    """)
    for u in range(4):
        g(f"buffer_load_dwordx2 v[{vHr(u)}:{vHr(u)+1}], v7, s[{S_H}:{S_H+3}], s60 offen offset:{16 * u}")
    g.label("K2_NOEPI")
    g(f"""
    s_waitcnt lgkmcnt(0)
    s_barrier
    """)
    g(f"""
    v_lshlrev_b32 v{vTmp(0)}, 4, v0                 ; e*16
    v_mov_b32 v{vTmp(1)}, {L_GBASE}
    ds_read_b128 v[200:203], v{vTmp(1)}
    ds_read_b128 v[204:207], v{vTmp(1)} offset:16
    v_cmp_gt_u32 vcc, 264, v0
    s_and_saveexec_b64 s[62:63], vcc
    s_cbranch_execz K2_red_done
    """)
    for w in range(8):
        g(f"ds_read_b128 v[{168+4*w}:{171+4*w}], v{vTmp(0)} offset:{8192 * w}")
    g(f"""
    v_mul_u32_u24 v{vTmp(2)}, 497, v0
    v_lshrrev_b32 v{vTmp(2)}, 14, v{vTmp(2)}        ; row = e / 33
    s_waitcnt lgkmcnt(0)
    s_mov_b64 s[12:13], exec
    """)
    for w in range(8):
        lab = g.newlabel("K2_red")
        g(f"""
        v_readfirstlane_b32 s100, v{200+w}
        s_cmp_ge_u32 s100, {NG}
        s_cbranch_scc1 {lab}
        s_lshl_b32 s101, s100, 3
        v_add_u32 v{vTmp(3)}, s101, v{vTmp(2)}
        v_cmp_gt_u32 vcc, {BN}, v{vTmp(3)}
        s_and_b64 exec, s[12:13], vcc
        s_cbranch_execz {lab}
        s_mul_i32 s101, s100, {8 * MROW}
        s_add_u32 s101, s101, {L_MACC}
        v_add_u32 v{vTmp(3)}, s101, v{vTmp(0)}
        ds_read_b128 v[208:211], v{vTmp(3)}
        s_waitcnt lgkmcnt(0)
        v_add_f32 v208, v208, v{168+4*w}
        v_add_f32 v209, v209, v{169+4*w}
        v_add_f32 v210, v210, v{170+4*w}
        v_add_f32 v211, v211, v{171+4*w}
        ds_write_b128 v{vTmp(3)}, v[208:211]
        s_waitcnt lgkmcnt(0)
        """)
        g.label(lab)
        g("s_mov_b64 exec, s[12:13]")
    g.label("K2_red_done")
    g(f"""
    s_mov_b64 exec, s[62:63]
    s_waitcnt lgkmcnt(0)
    s_barrier
    s_mov_b32 s{sF0}, s7
    s_cmp_lt_u32 s7, s{sTot}
    s_cbranch_scc1 K2_ROUND
    v_mul_u32_u24 v8, {MROW}, v5
    v_lshl_add_u32 v8, v3, 5, v8
    v_add_u32 v8, {L_MACC}, v8
    s_mov_b32 s61, 0x{NLN2:08x}
    """)
    stamp(g, 6, st)
    if dbg == "macc":
        dump_lds(g, L_MACC, BN * MROW, 32 << 20)
        g("s_branch K2_END")
    for s in range(8):
        g(f"""
        ds_read_b128 v[{vTmp(0)}:{vTmp(3)}], v8 offset:{64 * s}
        ds_read_b128 v[{vTmp(4)}:{vTmp(7)}], v8 offset:{64 * s + 16}
        s_waitcnt lgkmcnt(0)
        """)
        for k in range(8):
            g(f"v_mul_f32 v{vTmp(k)}, s61, v{vTmp(k)}")
        for d in range(4):
            g(f"v_cvt_pk_bf16_f32 v{vMf(s)+d}, v{vTmp(2*d)}, v{vTmp(2*d+1)}")
    g("s_waitcnt vmcnt(0)")
    for s in range(8):
        mfma(g, vAcc, vWh(s), vHf(s), vAcc if s else None)
    for s in range(8):
        mfma(g, vAcc, vWh(8 + s), vMf(s), vAcc)
    g(f"s_mov_b32 s62, 0x{C1:08x}")
    for u in range(4):
        a = vAcc + 4 * u
        g(f"""
        v_cvt_pk_bf16_f32 v216, v{a}, v{a+1}
        v_cvt_pk_bf16_f32 v217, v{a+2}, v{a+3}
        v_lshlrev_b32 v{a}, 16, v216
        v_and_b32 v{a+1}, 0xffff0000, v216
        v_lshlrev_b32 v{a+2}, 16, v217
        v_and_b32 v{a+3}, 0xffff0000, v217
        """)
        for k in range(4):
            g(f"v_mul_f32 v{218+k}, s62, v{a+k}")
        for k in range(4):
            g(f"v_exp_f32 v{218+k}, v{218+k}")
        for k in range(4):
            g(f"v_add_f32 v{218+k}, 1.0, v{218+k}")
        for k in range(4):
            g(f"v_rcp_f32 v{218+k}, v{218+k}")
        for k in range(4):
            g(f"v_mul_f32 v{218+k}, v{a+k}, v{218+k}")
        g(f"""
        v_cvt_pk_bf16_f32 v216, v218, v219
        v_cvt_pk_bf16_f32 v217, v220, v221
        v_lshlrev_b32 v218, 16, v216
        v_and_b32 v219, 0xffff0000, v216
        v_lshlrev_b32 v220, 16, v217
        v_and_b32 v221, 0xffff0000, v217
        v_lshlrev_b32 v222, 16, v{vHr(u)}
        v_and_b32 v223, 0xffff0000, v{vHr(u)}
        v_lshlrev_b32 v224, 16, v{vHr(u)+1}
        v_and_b32 v225, 0xffff0000, v{vHr(u)+1}
        v_add_f32 v218, v218, v222
        v_add_f32 v219, v219, v223
        v_add_f32 v220, v220, v224
        v_add_f32 v221, v221, v225
        v_cvt_pk_bf16_f32 v{226+2*u}, v218, v219
        v_cvt_pk_bf16_f32 v{227+2*u}, v220, v221
        """)
    g(f"""
    v_cmp_gt_u32 vcc, {BN}, v5
    s_and_saveexec_b64 s[62:63], vcc
    s_cbranch_execz K2_nost
    """)
    for u in range(4):
        g(f"buffer_store_dwordx2 v[{226+2*u}:{227+2*u}], v7, s[{S_OUT}:{S_OUT+3}], s60 offen offset:{16 * u}")
    g.label("K2_nost")
    g("s_mov_b64 exec, s[62:63]")
    g(f"""
    s_cmp_lg_u32 s{sW}, 7
    s_cbranch_scc1 K2_END
    v_cmp_gt_u32 vcc, {BN}, v1
    s_and_saveexec_b64 s[62:63], vcc
    v_mul_u32_u24 v4, {MROW}, v1
    v_add_u32 v4, {L_MACC + 512}, v4
    ds_read_b128 v[{vTmp(0)}:{vTmp(3)}], v4
    v_add_u32 v5, s{sNB}, v1
    v_mul_u32_u24 v5, 6, v5
    buffer_load_ushort v{vTmp(4)}, v5, s[{S_POS}:{S_POS+3}], 0 offen
    buffer_load_ushort v{vTmp(5)}, v5, s[{S_POS}:{S_POS+3}], 0 offen offset:2
    buffer_load_ushort v{vTmp(6)}, v5, s[{S_POS}:{S_POS+3}], 0 offen offset:4
    s_mov_b32 s60, 3200000
    s_waitcnt vmcnt(0) lgkmcnt(0)
    """)
    for x in range(3):
        g(f"""
        v_lshlrev_b32 v{vTmp(4+x)}, 16, v{vTmp(4+x)}
        v_fmac_f32 v{vTmp(4+x)}, s61, v{vTmp(x)}
        v_cvt_pk_bf16_f32 v{vTmp(4+x)}, v{vTmp(4+x)}, v{vTmp(4+x)}
        buffer_store_short v{vTmp(4+x)}, v5, s[{S_OUT}:{S_OUT+3}], s60 offen offset:{2 * x}
        """)
    g("s_mov_b64 exec, s[62:63]")
    g("s_branch K2_END")
    g.label("K2_END")
    if st:
        stamp(g, 7, st)
        g(f"""
        s_mov_b64 exec, -1
        s_cmp_ge_u32 s2, {NB}
        s_cbranch_scc1 K2_END2
        v_lshlrev_b32 v4, 2, v1
        s_lshl_b32 s59, s2, 3
        s_add_u32 s59, s59, s{sW}
        s_lshl_b32 s59, s59, 8
        s_add_u32 s59, s59, {48 << 20}
        buffer_store_dword v255, v4, s[{S_WS}:{S_WS+3}], s59 offen
        s_add_u32 s59, s59, {1 << 20}
        buffer_store_dword v254, v4, s[{S_WS}:{S_WS+3}], s59 offen
        """)
        g.label("K2_END2")
    if RT:
        g(f"""
        s_mov_b64 exec, -1
        s_waitcnt vmcnt(0) lgkmcnt(0)
        s_memrealtime s[94:95]
        s_load_dwordx2 s[12:13], s[0:1], 80
        v_mov_b32 v4, v0
        s_waitcnt lgkmcnt(0)
        """)
        srd(g, S_WS, 12, WS_BYTES)
        g(f"""
        v_mov_b32 v2, v255
        v_mov_b32 v3, s94
        s_lshl_b32 s61, s2, 4
        s_add_u32 s61, s61, {57 << 20}
        v_cmp_eq_u32 vcc, 0, v4
        s_and_saveexec_b64 s[62:63], vcc
        s_cbranch_execz K2_END3
        v_mov_b32 v4, 0
        buffer_store_dwordx2 v[2:3], v4, s[{S_WS}:{S_WS+3}], s61 offen
        """)
        g.label("K2_END3")
    g.label("K2_EXIT")
    g("s_endpgm")


def dump_lds(g, lds_off, nbytes, ws_off):
    lab = g.newlabel("dump")
    g(f"""
    s_barrier
    s_lshl_b32 s59, s2, 18
    s_add_u32 s59, s59, {ws_off}
    v_lshlrev_b32 v4, 2, v0
    v_add_u32 v5, {lds_off}, v4
    s_mov_b32 s60, 0
    """)
    g.label(lab)
    g(f"""
    v_add_u32 v6, s60, v5
    v_add_u32 v7, s60, v4
    ds_read_b32 v8, v6
    s_waitcnt lgkmcnt(0)
    buffer_store_dword v8, v7, s[{S_WS}:{S_WS+3}], s59 offen
    s_add_u32 s60, s60, 2048
    s_cmp_lt_u32 s60, {nbytes}
    s_cbranch_scc1 {lab}
    """)


if __name__ == "__main__":
    dbg = sys.argv[2] if len(sys.argv) > 2 else None
    out = sys.argv[1] if len(sys.argv) > 1 else "k.s"
    open(out, "w").write(build(lambda g: k2(g, dbg), k2_lds=163840))
    print("wrote", out)
```

```python
from gen import *
import os
OPT = set(os.environ.get('K2OPT', '').split(','))

L_BST = 0
L_REC = 65536
CAPT = 63
CAP = CAPT * 32
L_META = L_REC + CAP * 16
L_SSC = L_META + CAP * 4
L_MACC = L_SSC + 8 * 2048
MROW = 528
L_AT = L_MACC + BN * MROW
L_LUT = L_AT + NG * 2048
L_GCNT = L_LUT + 128
L_GBASE = L_GCNT + 32
L_BLK = L_GBASE + 32
L_END = L_BLK + 512
assert L_END <= 163840, L_END
FASTMAX = CAP - NG * 31

vRD = lambda s: 4 + s
vCS = lambda j: 12 + j
vI0, vI1 = 20, 24
vWF = lambda t: 28 + 4 * t
vWX = lambda t: 44 + t
vSrd, vSwr, vSz, vMask, vOr, vMetaRd, vMe, vRecS, vRecF, vFl, vTinfo, vFlp = 48, 49, 50, 51, 52, 53, 54, 55, 56, 57, 58, 59
vZero4 = 60
vSeg = lambda t: 64 + 16 * t
vRow = lambda s: 128 + 4 * s
vZa, vZb, vT, vP = 160, 176, 192, 208
vF, vS = 216, 220
vMeta = lambda j: 228 + j
vMeV, vSv, vFaddr, vSwaddr = 236, 237, 238, 239
vTmp = lambda i: 240 + i
vSn = 244
vPay16 = lambda i: 64 + 4 * i
vPay4 = lambda i: 128 + i
vRank = lambda i: 144 + i

S_WS, S_H, S_OUT, S_POS, S_WX = 16, 20, 24, 28, 32
sW, sNB = 36, 37
sTE = lambda g: 38 + g
sT, sTau, sTau1, sG, sNV, sTn, sGn, sNVn, sHas = 46, 47, 48, 49, 50, 51, 52, 53, 54
sBST, sKH, sMHI = 55, 56, 58
sL31 = 14
sEndG = 45
sMaskSlot = lambda i: 64 + 2 * i


def onehot4(g, dst, vx, vlo, vhi):
    for d in range(4):
        g(f"""
        v_cmp_eq_u32 vcc, {2*d}, v{vx}
        v_cndmask_b32 v{dst+d}, 0, v{vlo}, vcc
        v_cmp_eq_u32 vcc, {2*d+1}, v{vx}
        v_cndmask_b32 v{dst+d}, v{dst+d}, v{vhi}, vcc
        """)


def mfma(g, d, a, b, c):
    if 'nomfma' in OPT and d < 200 and d != 72 and d != 88: return
    cs = "0" if c is None else f"v[{c}:{c+15}]"
    g(f"v_mfma_f32_32x32x16_bf16 v[{d}:{d+15}], v[{a}:{a+3}], v[{b}:{b+3}], {cs}")


def zmfma(g, t, z):
    mfma(g, z, vF, vWF(t), None)
    mfma(g, z, vRow(2 * t), vI0, z)
    mfma(g, z, vRow(2 * t + 1), vI1, z)


def silu(g, z, inject=None):
    inject = inject or {}
    if 'nosilu' in OPT:
        for i in range(8): g(f"v_cvt_pk_bf16_f32 v{vP+i}, v{z+2*i}, v{z+2*i+1}")
        for k in sorted(inject): inject[k](g)
        return
    ins = [f"v_exp_f32 v{vT+i}, v{z+i}" for i in range(16)]
    ins += [f"v_pk_add_f32 v[{vT+2*i}:{vT+2*i+1}], v[{vT+2*i}:{vT+2*i+1}], 1.0 op_sel_hi:[1,0]" for i in range(8)]
    ins += [f"v_rcp_f32 v{vT+i}, v{vT+i}" for i in range(16)]
    ins += [f"v_pk_mul_f32 v[{vT+2*i}:{vT+2*i+1}], v[{z+2*i}:{z+2*i+1}], v[{vT+2*i}:{vT+2*i+1}]" for i in range(8)]
    ins += [f"v_cvt_pk_bf16_f32 v{vP+i}, v{vT+2*i}, v{vT+2*i+1}" for i in range(8)]
    for k, l in enumerate(ins):
        if k in inject: inject[k](g)
        g(l)


def segmfma(g, t):
    mfma(g, vSeg(t), vS, vP, vSeg(t))
    mfma(g, vSeg(t), vS + 4, vP + 4, vSeg(t))


def prep_reads(g, st):
    g(f"""
    s_lshl_b32 s59, s{st}, 7
    s_lshl_b32 s60, s{st}, 9
    v_add_u32 v{vTmp(0)}, s59, v{vMetaRd}
    v_add_u32 v{vTmp(1)}, s59, v{vMe}
    v_add_u32 v{vTmp(2)}, s60, v{vRecS}
    ds_read_b128 v[{vMeta(0)}:{vMeta(3)}], v{vTmp(0)}
    ds_read_b128 v[{vMeta(4)}:{vMeta(7)}], v{vTmp(0)} offset:16
    ds_read_b32 v{vMeV}, v{vTmp(1)}
    ds_read_b32 v{vSv}, v{vTmp(2)}
    """)


def prep_zero(g):
    if 'nosbuild' in OPT: return
    g(f"""
    ds_write_b128 v{vSz}, v[{vZero4}:{vZero4+3}]
    ds_write_b128 v{vSz}, v[{vZero4}:{vZero4+3}] offset:1024
    """)


def prep_issue(g, st, snv):
    for j in range(8):
        g(f"v_and_or_b32 v{vMeta(j)}, v{vMeta(j)}, s{sMHI}, v{vCS(j)}")
    for j in range(8):
        g(f"""
        s_add_u32 m0, s{sBST}, {1024 * j}
        buffer_load_dwordx4 v{vMeta(j)}, s[{S_WS}:{S_WS+3}], 0 offen lds
        """ if 'nodma' not in OPT else "")
    g(f"""
    v_and_b32 v{vTmp(0)}, 7, v{vMeV}                          ; slot
    s_mov_b32 s59, {L_LUT}
    v_lshl_add_u32 v{vTmp(1)}, v{vTmp(0)}, 4, s59
    s_lshl_b32 s60, s{st}, 9
    v_add_u32 v{vTmp(2)}, s60, v{vRecF}
    v_cndmask_b32 v{vFaddr}, v{vTmp(1)}, v{vTmp(2)}, s[{sKH}:{sKH+1}]
    v_lshl_add_u32 v{vSwaddr}, v{vTmp(0)}, 8, v{vSwr}
    v_and_or_b32 v{vSv}, v{vSv}, v{vMask}, v{vOr}
    v_cmp_gt_u32 vcc, s{snv}, v2
    s_mov_b64 exec, vcc
    ds_write_b16 v{vSwaddr}, v{vSv}
    ds_write_b16_d16_hi v{vSwaddr}, v{vSv} offset:64
    s_mov_b64 exec, -1
    """ if 'nosbuild' not in OPT else "")


def load_wf(g, sg=None):
    sg = sG if sg is None else sg
    g(f"""
    s_lshl_b32 s59, s{sg}, 11
    s_add_u32 s59, s59, {L_AT}
    v_lshlrev_b32 v{vTmp(0)}, 4, v2
    v_add_u32 v{vTmp(0)}, s59, v{vTmp(0)}
    s_mov_b64 exec, 0xffffffff
    """)
    for t in range(4):
        g(f"ds_read_b128 v[{vWF(t)}:{vWF(t)+3}], v{vTmp(0)} offset:{512 * t}")
    g("s_mov_b64 exec, -1")


def flush_common(g):
    for i in range(4):
        for x in range(1, 4):
            d = vT + 3 * i + (x - 1)
            g(f"v_mul_f32 v{d}, v{vWX(0)}, v{vSeg(0) + 4*i + x}")
            for t in range(1, 4):
                g(f"v_fmac_f32 v{d}, v{vWX(t)}, v{vSeg(t) + 4*i + x}")
    for sh in (1, 2, 4, 8):
        for k in range(12):
            g(f"v_add_f32_dpp v{vT+k}, v{vT+k}, v{vT+k} row_shr:{sh} row_mask:0xf bank_mask:0xf bound_ctrl:0")
    for k in range(12):
        g(f"v_add_f32_dpp v{vT+k}, v{vT+k}, v{vT+k} row_bcast:15 row_mask:0xa bank_mask:0xf")


def flush_mid(g):
    flush_common(g)
    g(f"""
    s_mul_i32 s59, s{sG}, {8 * MROW}
    v_add_u32 v{vTmp(0)}, s59, v{vFl}
    v_add_u32 v{vTmp(1)}, s59, v{vFlp}
    """)
    pt = lambda k: (vP + k) if k < 8 else vMeta(k - 8)
    for t in range(4):
        for i in range(4):
            g(f"ds_read_b32 v{vZb + 4*t + i}, v{vTmp(0)} offset:{2 * i * MROW + 128 * t}")
            if 4 * t + i == 13: g("s_waitcnt lgkmcnt(6)")
    g(f"s_mov_b64 exec, s[{sL31}:{sL31+1}]")
    for i in range(4):
        for x in range(3):
            g(f"ds_read_b32 v{pt(3*i + x)}, v{vTmp(1)} offset:{2 * i * MROW + 512 + 4 * x}")
    g("s_waitcnt lgkmcnt(0)")
    for i in range(4):
        for x in range(3):
            g(f"v_add_f32 v{pt(3*i + x)}, v{pt(3*i + x)}, v{vT + 3*i + x}")
    for i in range(4):
        for x in range(3):
            g(f"ds_write_b32 v{vTmp(1)}, v{pt(3*i + x)} offset:{2 * i * MROW + 512 + 4 * x}")
    g("s_mov_b64 exec, -1")
    for t in range(4):
        for i in range(4):
            g(f"v_add_f32 v{vZb + 4*t + i}, v{vZb + 4*t + i}, v{vSeg(t) + 4*i}")
    g("s_waitcnt lgkmcnt(2)")
    for t in range(4):
        for i in range(4):
            g(f"ds_write_b32 v{vTmp(0)}, v{vZb + 4*t + i} offset:{2 * i * MROW + 128 * t}")


def flush_end(g):
    flush_common(g)
    g(f"""
    s_sub_u32 s59, s{sBST}, {L_MACC}
    v_add_u32 v{vTmp(0)}, s59, v{vFl}
    v_add_u32 v{vTmp(1)}, s59, v{vFlp}
    """)
    for t in range(4):
        for i in range(4):
            g(f"ds_write_b32 v{vTmp(0)}, v{vSeg(t) + 4*i} offset:{2 * i * MROW + 128 * t}")
    g(f"s_mov_b64 exec, s[{sL31}:{sL31+1}]")
    for i in range(4):
        for x in range(3):
            g(f"ds_write_b32 v{vTmp(1)}, v{vT + 3*i + x} offset:{2 * i * MROW + 512 + 4 * x}")
    g("s_mov_b64 exec, -1")


def stamp(g, k, on):
    if on:
        g(f"""
        s_memtime s[98:99]
        s_waitcnt lgkmcnt(0)
        v_writelane_b32 v255, s98, {k}
        """)


def istamp(g, k, on):
    if on and ISTAMP_ON:
        g(f"""
        s_memtime s[98:99]
        s_add_u32 s100, s101, {k}
        s_waitcnt lgkmcnt(0)
        s_mov_b32 m0, s100
        v_writelane_b32 v254, s98, m0
        """)


def k2(g, dbg=None):
    st = dbg == "time"
    global ISTAMP_ON
    ISTAMP_ON = 'noistamp' not in OPT
    g.label(K2)
    if RT: g("s_memrealtime s[92:93]")
    g(f"""
    s_cmp_ge_u32 s2, {NB}
    s_cbranch_scc1 K2_EXIT
    s_load_dwordx2 s[4:5], s[0:1], 0
    s_load_dwordx2 s[6:7], s[0:1], 8
    s_load_dwordx2 s[8:9], s[0:1], 48
    s_load_dwordx2 s[10:11], s[0:1], 64
    s_load_dwordx2 s[12:13], s[0:1], 80
    v_and_b32 v1, 63, v0
    v_and_b32 v2, 31, v1
    v_lshrrev_b32 v3, 5, v1
    v_lshrrev_b32 v192, 6, v0
    v_readfirstlane_b32 s{sW}, v192
    s_mul_i32 s{sNB}, s2, {BN}
    s_waitcnt lgkmcnt(0)
    """)
    if RT: g("v_mov_b32 v255, s92")
    stamp(g, 0, st)
    srd(g, S_H, 4, N * 256)
    srd(g, S_POS, 6, N * 6)
    srd(g, S_WX, 8, 256)
    srd(g, S_OUT, 10, 1637500 * 2)
    srd(g, S_WS, 12, WS_BYTES)
    vTt = lambda r: vTmp(1 + r)
    L_IDX = 0
    sF0, sTot, sNR = 4, 5, 6
    g(f"""
    s_lshl_b32 s59, s2, 10
    s_add_u32 s59, s59, {OFF_TAB}
    v_lshlrev_b32 v194, 2, v1                       ; lane*4
    v_lshlrev_b32 v195, 4, v1                       ; lane*16
    buffer_load_dword v{vTt(0)}, v194, s[{S_WS}:{S_WS+3}], s59 offen
    buffer_load_dword v{vTt(1)}, v194, s[{S_WS}:{S_WS+3}], s59 offen offset:256
    buffer_load_dword v{vTt(2)}, v194, s[{S_WS}:{S_WS+3}], s59 offen offset:512
    buffer_load_dword v{vTt(3)}, v194, s[{S_WS}:{S_WS+3}], s59 offen offset:768
    s_mul_i32 s61, s2, {NG * 2048}
    s_add_u32 s61, s61, {OFF_AT}
    s_lshl_b32 s62, s{sW}, 10
    s_add_u32 s63, s61, s62
    s_add_u32 m0, s62, {L_AT}
    buffer_load_dwordx4 v195, s[{S_WS}:{S_WS+3}], s63 offen lds
    s_cmp_ge_u32 s{sW}, {2 * NG - 8}
    s_cbranch_scc1 K2_noat2
    s_add_u32 s63, s63, 8192
    s_add_u32 m0, s62, {L_AT + 8192}
    buffer_load_dwordx4 v195, s[{S_WS}:{S_WS+3}], s63 offen lds
    """)
    g.label("K2_noat2")
    g(f"""
    v_lshlrev_b32 v193, 4, v2                       ; n*16
    s_mov_b32 s59, {OFF_WF5}
    """)
    for t in range(4):
        g(f"buffer_load_dwordx4 v[{vWF(t)}:{vWF(t)+3}], v193, s[{S_WS}:{S_WS+3}], s59 offen offset:{512 * t}")
    g("v_lshlrev_b32 v193, 1, v2")
    for t in range(4):
        g(f"buffer_load_ushort v{vWX(t)}, v193, s[{S_WX}:{S_WX+3}], 0 offen offset:{64 * t}")
    g(f"""
    s_lshl_b32 s{sBST}, s{sW}, 13
    s_mov_b32 s{sKH}, 0
    s_mov_b32 s{sKH+1}, -1
    s_mov_b32 s{sMHI}, 0xffffff00
    s_mov_b32 s{sL31}, 0x80000000
    s_mov_b32 s{sL31+1}, 0x80000000
    v_mov_b32 v{vZero4}, 0
    v_mov_b32 v{vZero4+1}, 0
    v_mov_b32 v{vZero4+2}, 0
    v_mov_b32 v{vZero4+3}, 0
    v_and_b32 v192, 7, v2
    v_lshlrev_b32 v192, 2, v192
    v_lshrrev_b32 v193, 3, v2
    v_add_u32 v192, v192, v193
    v_lshlrev_b32 v192, 8, v192
    v_add_u32 v192, s{sBST}, v192
    v_and_b32 v193, 15, v2                          ; m&15
    """)
    for s_ in range(8):
        g(f"""
        v_add_u32 v194, {2*s_}, v3
        v_xor_b32 v194, v194, v193
        v_lshl_add_u32 v{vRD(s_)}, v194, 4, v192
        """)
    g("""
    v_and_b32 v193, 15, v1
    v_bfe_u32 v194, v1, 4, 1
    v_lshlrev_b32 v194, 3, v194
    v_xor_b32 v193, v193, v194
    """)
    for j in range(8):
        g(f"""
        v_xor_b32 v194, {j}, v193
        v_lshlrev_b32 v{vCS(j)}, 4, v194
        """)
    g(f"""
    v_mov_b32 v196, 0x3f80
    v_mov_b32 v197, 0x3f800000
    v_lshlrev_b32 v192, 3, v3
    v_sub_u32 v192, v2, v192                          ; n - 8kh
    """)
    onehot4(g, vI0, 192, 196, 197)
    g("v_subrev_u32 v192, 16, v192")
    onehot4(g, vI1, 192, 196, 197)
    g(f"""
    s_lshl_b32 s59, s{sW}, 11
    s_add_u32 s59, s59, {L_SSC}
    v_lshlrev_b32 v192, 6, v2
    v_lshl_add_u32 v192, v3, 4, v192
    v_add_u32 v{vSrd}, s59, v192                    ; m*64 + kh*16
    v_lshlrev_b32 v192, 4, v1
    v_add_u32 v{vSz}, s59, v192
    v_lshrrev_b32 v192, 4, v2
    v_lshlrev_b32 v192, 5, v192
    v_bfe_u32 v193, v2, 2, 1
    v_lshl_add_u32 v192, v193, 4, v192
    v_bfe_u32 v193, v2, 3, 1
    v_lshl_add_u32 v192, v193, 3, v192
    v_and_b32 v193, 3, v2
    v_lshl_add_u32 v192, v193, 1, v192
    v_lshl_add_u32 v192, v3, 7, v192
    v_add_u32 v{vSwr}, s59, v192
    v_mov_b32 v192, 0xffff0000
    v_mov_b32 v193, -1
    v_cndmask_b32 v{vMask}, v192, v193, s[{sKH}:{sKH+1}]
    v_mov_b32 v193, 0
    v_cndmask_b32 v{vOr}, v196, v193, s[{sKH}:{sKH+1}]
    v_lshrrev_b32 v192, 4, v1
    v_lshlrev_b32 v192, 5, v192
    v_add_u32 v{vMetaRd}, {L_META}, v192
    v_lshlrev_b32 v192, 2, v2
    v_add_u32 v{vMe}, {L_META}, v192
    v_lshlrev_b32 v192, 4, v2
    v_add_u32 v{vRecF}, {L_REC}, v192
    v_lshlrev_b32 v193, 2, v3
    v_add3_u32 v{vRecS}, v{vRecF}, v193, 8
    v_mul_u32_u24 v192, {MROW}, v3
    v_add_u32 v{vFlp}, {L_MACC}, v192
    v_lshlrev_b32 v193, 2, v2
    v_add_u32 v{vFl}, v{vFlp}, v193
    """)
    g(f"""
    v_lshlrev_b32 v192, 4, v0
    v_add_u32 v192, {L_MACC}, v192
    ds_write_b128 v192, v[{vZero4}:{vZero4+3}]
    ds_write_b128 v192, v[{vZero4}:{vZero4+3}] offset:8192
    ds_write_b128 v192, v[{vZero4}:{vZero4+3}] offset:16384
    v_cmp_gt_u32 vcc, {(BN * MROW - 24576) // 16}, v0
    s_and_saveexec_b64 s[62:63], vcc
    s_cbranch_execz K2_z1
    ds_write_b128 v192, v[{vZero4}:{vZero4+3}] offset:24576
    """)
    g.label("K2_z1")
    g(f"""
    s_mov_b64 exec, s[62:63]
    s_cmp_lg_u32 s{sW}, 0
    s_cbranch_scc1 K2_z2
    """)
    onehot4(g, 204, 1, 196, 197)
    g(f"""
    v_cmp_gt_u32 vcc, 8, v1
    s_and_saveexec_b64 s[62:63], vcc
    v_lshlrev_b32 v192, 4, v1
    v_add_u32 v192, {L_LUT}, v192
    ds_write_b128 v192, v[204:207]
    s_mov_b64 exec, s[62:63]
    """)
    g.label("K2_z2")
    stamp(g, 1, st)
    g("s_waitcnt vmcnt(9)")
    stamp(g, 14, st)
    vCn = lambda r: 208 + r
    vSc = lambda r: 212 + r
    vOff, vCnt, vGb = 216, 217, 253
    for r in range(4):
        g(f"v_lshrrev_b32 v{vCn(r)}, 16, v{vTt(r)}")
    g(f"""
    v_cmp_gt_u32 vcc, {P - 192}, v1
    v_cndmask_b32 v{vCn(3)}, 0, v{vCn(3)}, vcc
    """)
    for r in range(4):
        g(f"v_mov_b32 v{vSc(r)}, v{vCn(r)}")
    for mod in ("row_shr:1 row_mask:0xf bank_mask:0xf bound_ctrl:0", "row_shr:2 row_mask:0xf bank_mask:0xf bound_ctrl:0",
                "row_shr:4 row_mask:0xf bank_mask:0xf bound_ctrl:0", "row_shr:8 row_mask:0xf bank_mask:0xf bound_ctrl:0",
                "row_bcast:15 row_mask:0xa bank_mask:0xf", "row_bcast:31 row_mask:0xc bank_mask:0xf"):
        for r in range(4):
            g(f"v_add_u32_dpp v{vSc(r)}, v{vSc(r)}, v{vSc(r)} {mod}")
    g(f"""
    v_readlane_b32 s59, v{vSc(0)}, 63
    v_readlane_b32 s60, v{vSc(1)}, 63
    v_readlane_b32 s61, v{vSc(2)}, 63
    v_readlane_b32 s62, v{vSc(3)}, 63
    s_add_u32 s60, s60, s59                         ; tot0+tot1
    s_add_u32 s61, s61, s60
    s_add_u32 s{sTot}, s62, s61
    v_mov_b32 v{vCnt}, 0
    v_mov_b32 v{vOff}, 0
    v_mov_b32 v{vGb}, 0
    """)
    for r in range(4):
        lab = g.newlabel("K2_sel")
        pre = ["0", "s59", "s60", "s61"][r]
        g(f"""
        s_cmp_lg_u32 s{sW}, {r}
        s_cbranch_scc1 {lab}
        v_mov_b32 v{vCnt}, v{vCn(r)}
        v_sub_u32 v{vOff}, v{vSc(r)}, v{vCn(r)}
        v_add_u32 v{vOff}, {pre}, v{vOff}
        v_add_u32 v192, {64 * r}, v1
        v_mul_u32_u24 v192, {C}, v192
        v_and_b32 v{vGb}, 0xffff, v{vTt(r)}
        v_add_u32 v{vGb}, v{vGb}, v192
        """)
        g.label(lab)
    g(f"v_lshl_or_b32 v252, v{vOff}, 11, v{vCnt}")
    if 'noprefetch' not in OPT:
        g(f"""
        v_lshlrev_b32 v192, 4, v{vGb}
        s_mov_b32 s59, {OFF_P16}
        buffer_load_dword v236, v192, s[{S_WS}:{S_WS+3}], s59 offen
        v_lshlrev_b32 v192, 2, v{vGb}
        s_mov_b32 s59, {OFF_P4}
        buffer_load_dword v237, v192, s[{S_WS}:{S_WS+3}], s59 offen
        """)
    g(f"s_mov_b32 s{sF0}, 0")
    stamp(g, 15, st)
    g.label("K2_ROUND")
    g(f"""
    s_mov_b32 s{sEndG}, 7
    s_sub_u32 s{sNR}, s{sTot}, s{sF0}
    s_min_u32 s{sNR}, s{sNR}, {FASTMAX}
    v_and_b32 v192, 7, v1
    v_lshlrev_b32 v192, 2, v192
    v_add_u32 v192, {L_GCNT}, v192
    ds_write_b32 v192, v{vZero4}
    v_lshrrev_b32 v{vOff}, 11, v252
    v_and_b32 v{vCnt}, 0x7ff, v252
    v_subrev_u32 v192, v{vOff}, v{vZero4}
    v_add_u32 v192, s{sF0}, v192
    v_med3_i32 v193, v192, 0, v{vCnt}               ; k0
    v_add_u32 v192, {FASTMAX}, v192
    v_med3_i32 v194, v192, 0, v{vCnt}               ; k1
    v_add_u32 v196, v{vOff}, v193
    v_subrev_u32 v196, s{sF0}, v196
    v_lshlrev_b32 v196, 2, v196
    v_add_u32 v197, v{vGb}, v193                    ; value
    """)
    g.label("K2_EXP")
    g(f"""
    v_cmp_lt_u32 vcc, v193, v194
    s_and_b64 exec, exec, vcc
    s_cbranch_execz K2_EXPD
    ds_write_b32 v196, v197 offset:{L_IDX}
    v_add_u32 v193, 1, v193
    v_add_u32 v196, 4, v196
    v_add_u32 v197, 1, v197
    s_branch K2_EXP
    """)
    g.label("K2_EXPD")
    g(f"""
    s_mov_b64 exec, -1
    s_waitcnt lgkmcnt(0)
    s_barrier
    v_lshlrev_b32 v192, 2, v0
    """)
    stamp(g, 2, st)
    NS = 4
    for j in range(NS):
        g(f"ds_read_b32 v{vRank(j)}, v192 offset:{L_IDX + 2048 * j}")
    g(f"""
    s_mov_b32 s59, {OFF_P16}
    s_mov_b32 s60, {OFF_P4}
    s_waitcnt lgkmcnt(0)
    """)
    for j in range(NS):
        mk = sMaskSlot(j)
        g(f"""
        s_sub_u32 s61, s{sNR}, {512 * j}
        s_max_i32 s61, s61, 0
        v_cmp_gt_u32 s[{mk}:{mk+1}], s61, v0
        v_lshlrev_b32 v196, 4, v{vRank(j)}
        v_lshlrev_b32 v197, 2, v{vRank(j)}
        s_mov_b64 exec, s[{mk}:{mk+1}]
        buffer_load_dword v{vPay4(j)}, v197, s[{S_WS}:{S_WS+3}], s60 offen
        buffer_load_dwordx4 v[{vPay16(j)}:{vPay16(j)+3}], v196, s[{S_WS}:{S_WS+3}], s59 offen
        s_mov_b64 exec, -1
        """)
    g(f"""
    v_mov_b32 v192, 1
    s_mov_b32 s59, {L_GCNT}
    """)
    for j in range(NS):
        mk = sMaskSlot(j)
        g(f"""
        s_waitcnt vmcnt({2 * (NS - 1 - j) + 1})
        v_bfe_u32 v193, v{vPay4(j)}, 3, 3
        v_lshl_add_u32 v193, v193, 2, s59
        s_mov_b64 exec, s[{mk}:{mk+1}]
        ds_add_rtn_u32 v{vRank(j)}, v193, v192
        s_mov_b64 exec, -1
        """)
    stamp(g, 16, st)
    g(f"""
    s_waitcnt lgkmcnt(0)
    s_barrier
    v_and_b32 v192, 7, v1
    v_lshlrev_b32 v192, 2, v192
    v_add_u32 v193, {L_GCNT}, v192
    ds_read_b32 v196, v193
    s_waitcnt lgkmcnt(0)
    """)
    stamp(g, 3, st)
    g("s_mov_b32 s96, 0")
    vVe, vBase = 198, 199
    for gi in range(NG):
        g(f"""
        v_readlane_b32 s97, v196, {gi}
        v_writelane_b32 v{vBase}, s96, {gi}
        s_add_u32 s98, s96, s97
        v_writelane_b32 v{vVe}, s98, {gi}
        s_add_u32 s96, s98, 31
        s_and_b32 s96, s96, 0xffffffe0
        s_lshr_b32 s{sTE(gi)}, s96, 5
        """)
    g(f"""
    s_mov_b32 s{sT}, s{sTE(NG-1)}
    v_cmp_gt_u32 vcc, 8, v1
    v_add_u32 v193, {L_GBASE}, v192
    s_mov_b64 exec, vcc
    ds_write_b32 v193, v{vBase}
    s_mov_b64 exec, -1
    v_mov_b32 v200, 0
    """)
    for gi in range(NG - 1):
        g(f"""
        v_cmp_le_u32 vcc, s{sTE(gi)}, v1
        v_addc_co_u32 v200, vcc, 0, v200, vcc
        """)
    g(f"""
    v_lshlrev_b32 v201, 2, v200
    ds_bpermute_b32 v201, v201, v{vVe}
    v_lshlrev_b32 v202, 5, v1
    s_mov_b32 s59, {L_GBASE}
    s_mov_b32 s60, {L_REC}
    s_mov_b32 s61, {L_META}
    """)
    vBs = lambda i: vZa + i
    for j in range(NS):
        g(f"""
        v_bfe_u32 v193, v{vPay4(j)}, 3, 3
        v_lshl_add_u32 v193, v193, 2, s59
        ds_read_b32 v{vBs(j)}, v193
        """)
    g(f"""
    s_waitcnt vmcnt(0) lgkmcnt(0)
    s_cmp_lg_u32 s{sF0}, 0
    s_cbranch_scc1 K2_nowx
    v_lshlrev_b32 v{vWX(0)}, 16, v{vWX(0)}
    v_lshlrev_b32 v{vWX(1)}, 16, v{vWX(1)}
    v_lshlrev_b32 v{vWX(2)}, 16, v{vWX(2)}
    v_lshlrev_b32 v{vWX(3)}, 16, v{vWX(3)}
    """)
    g.label("K2_nowx")
    g(f"""
    v_sub_u32 v201, v201, v202
    v_min_u32 v201, 32, v201
    v_lshl_or_b32 v{vTinfo}, v201, 8, v200
    """)
    for j in range(NS):
        mk = sMaskSlot(j)
        g(f"""
        v_add_u32 v194, v{vBs(j)}, v{vRank(j)}
        v_and_b32 v195, 0xffffff07, v{vPay4(j)}
        v_lshl_add_u32 v192, v194, 4, s60
        v_lshl_add_u32 v193, v194, 2, s61
        s_mov_b64 exec, s[{mk}:{mk+1}]
        ds_write_b128 v192, v[{vPay16(j)}:{vPay16(j)+3}]
        ds_write_b32 v193, v195
        s_mov_b64 exec, -1
        """)
    stamp(g, 17, st)
    g(f"""
    s_cmp_ge_u32 s{sW}, {NG}
    s_cbranch_scc1 K2_nopad
    v_readlane_b32 s96, v{vVe}, s{sW}
    s_add_u32 s97, s96, 31
    s_and_b32 s97, s97, 0xffffffe0
    v_add_u32 v194, s96, v1
    v_cmp_gt_u32 vcc, s97, v194
    s_and_saveexec_b64 s[62:63], vcc
    s_cbranch_execz K2_nopad2
    v_lshl_add_u32 v192, v194, 4, s60
    ds_write_b128 v192, v[{vZero4}:{vZero4+3}]
    v_lshl_add_u32 v192, v194, 2, s61
    ds_write_b32 v192, v{vZero4}
    """)
    g.label("K2_nopad2")
    g("s_mov_b64 exec, s[62:63]")
    g.label("K2_nopad")
    g(f"""
    s_waitcnt vmcnt(0) lgkmcnt(0)
    s_barrier
    """)
    stamp(g, 4, st)
    sH1, sH2, sG1, sNV2 = sHas, 61, sGn, sNVn
    def read_ops(g, sdst):
        if 'noreads' in OPT: return
        for s_ in range(8):
            g(f"ds_read_b128 v[{vRow(s_)}:{vRow(s_)+3}], v{vRD(s_)}")
        g(f"""
        ds_read_b128 v[{vF}:{vF+3}], v{vFaddr}
        ds_read_b128 v[{sdst}:{sdst+3}], v{vSrd}
        ds_read_b128 v[{sdst+4}:{sdst+7}], v{vSrd} offset:32
        """)
    g(f"""
    s_mul_i32 s59, s{sT}, s{sW}
    s_lshr_b32 s{sTau}, s59, 3
    s_add_u32 s59, s59, s{sT}
    s_lshr_b32 s{sTau1}, s59, 3
    s_cmp_ge_u32 s{sTau}, s{sTau1}
    s_cbranch_scc1 K2_MAINDONE
    v_readlane_b32 s59, v{vTinfo}, s{sTau}
    s_and_b32 s{sG}, s59, 0xff
    s_lshr_b32 s{sNV}, s59, 8
    """)
    for r in range(64):
        g(f"v_mov_b32 v{vSeg(0) + r}, 0")
    load_wf(g)
    prep_reads(g, sTau)
    prep_zero(g)
    g("s_waitcnt lgkmcnt(0)")
    prep_issue(g, sTau, sNV)
    g("s_waitcnt vmcnt(0)")
    read_ops(g, vS)
    g(f"""
    s_add_u32 s{sTn}, s{sTau}, 1
    s_cmp_ge_u32 s{sTn}, s{sTau1}
    s_cbranch_scc1 K2_I1
    v_readlane_b32 s59, v{vTinfo}, s{sTn}
    s_lshr_b32 s{sNV}, s59, 8
    """)
    prep_reads(g, sTn)
    g("s_waitcnt lgkmcnt(4)")
    prep_zero(g)
    g("s_waitcnt lgkmcnt(2)")
    prep_issue(g, sTn, sNV)
    g.label("K2_I1")
    g("s_waitcnt lgkmcnt(0)")
    zmfma(g, 0, vZa)
    if st: g("s_mov_b32 s101, 0")
    g.label("K2_LOOP")
    istamp(g, 0, st)
    g(f"""
    s_add_u32 s{sTn}, s{sTau}, 1
    s_cmp_lt_u32 s{sTn}, s{sTau1}
    s_cselect_b32 s{sH1}, 1, 0
    s_min_u32 s59, s{sTn}, 63
    v_readlane_b32 s59, v{vTinfo}, s59
    s_add_u32 s62, s{sTau}, 2
    s_cmp_lt_u32 s62, s{sTau1}
    s_cselect_b32 s{sH2}, 1, 0
    s_min_u32 s62, s62, 63
    v_readlane_b32 s60, v{vTinfo}, s62
    s_and_b32 s{sG1}, s59, 0xff
    s_lshr_b32 s{sNV2}, s60, 8
    """)
    if 'noprio' not in OPT:
        g(f"""
        s_sub_u32 s62, s{sTau1}, s{sTau}
        s_cmp_ge_u32 s62, 6
        s_cbranch_scc1 K2_P3
        s_cmp_ge_u32 s62, 4
        s_cbranch_scc1 K2_P2
        s_cmp_ge_u32 s62, 2
        s_cbranch_scc1 K2_P1
        s_setprio 0
        s_branch K2_PD
        """)
        g.label("K2_P1")
        g("s_setprio 1")
        g("s_branch K2_PD")
        g.label("K2_P2")
        g("s_setprio 2")
        g("s_branch K2_PD")
        g.label("K2_P3")
        g("s_setprio 3")
        g.label("K2_PD")
    def zm(t, z, k):
        if k == 0: return lambda g: mfma(g, z, vF, vWF(t), None)
        if k == 1: return lambda g: mfma(g, z, vRow(2 * t), vI0, z)
        return lambda g: mfma(g, z, vRow(2 * t + 1), vI1, z)
    def sg(t, k):
        return (lambda g: mfma(g, vSeg(t), vS, vP, vSeg(t))) if k == 0 else (lambda g: mfma(g, vSeg(t), vS + 4, vP + 4, vSeg(t)))
    silu(g, vZa, {1: zm(1, vZb, 0), 5: zm(1, vZb, 1), 9: zm(1, vZb, 2)})
    istamp(g, 1, st)
    def inj_pr(g):
        lab = g.newlabel("K2_pr")
        g(f"""
        s_cmp_eq_u32 s{sH2}, 0
        s_cbranch_scc1 {lab}
        s_add_u32 s62, s{sTau}, 2
        """)
        prep_reads(g, 62)
        g.label(lab)
    silu(g, vZb, {1: sg(0, 0), 5: sg(0, 1), 9: zm(2, vZa, 0), 13: zm(2, vZa, 1), 25: zm(2, vZa, 2), 32: inj_pr})
    istamp(g, 2, st)
    def inj_b2(g):
        lab = g.newlabel("K2_b2")
        g(f"""
        s_cmp_eq_u32 s{sH1}, 0
        s_cbranch_scc1 {lab}
        s_waitcnt vmcnt(0)
        """)
        read_ops(g, vSn)
        g.label(lab)
    def inj_dma(g):
        lab = g.newlabel("K2_dm")
        g(f"""
        s_cmp_eq_u32 s{sH2}, 0
        s_cbranch_scc1 {lab}
        s_waitcnt lgkmcnt(0)
        """)
        prep_zero(g)
        g(f"s_add_u32 s62, s{sTau}, 2")
        prep_issue(g, 62, sNV2)
        g.label(lab)
    silu(g, vZa, {1: sg(1, 0), 5: sg(1, 1), 9: zm(3, vZb, 0), 13: zm(3, vZb, 1), 25: zm(3, vZb, 2), 36: inj_b2, 50: inj_dma})
    istamp(g, 3, st)
    g(f"""
    s_cmp_eq_u32 s{sH1}, 0
    s_cbranch_scc1 K2_B3C
    s_cmp_eq_u32 s{sG1}, s{sG}
    s_cbranch_scc1 K2_B3B
    """)
    load_wf(g, sG1)
    g.label("K2_B3B")
    g.label("K2_B3C")
    g("s_waitcnt lgkmcnt(0)")
    silu(g, vZb, {1: sg(2, 0), 5: sg(2, 1), 9: zm(0, vZa, 0), 13: zm(0, vZa, 1), 25: zm(0, vZa, 2)})
    segmfma(g, 3)
    istamp(g, 4, st)
    g(f"""
    s_cmp_eq_u32 s{sH1}, 0
    s_cbranch_scc1 K2_FLEND
    """)
    for r in range(8):
        g(f"v_mov_b32 v{vS + r}, v{vSn + r}")
    g(f"""
    s_cmp_eq_u32 s{sG1}, s{sG}
    s_cbranch_scc1 K2_NEXT
    """)
    flush_mid(g)
    g(f"s_mov_b32 s{sG}, s{sG1}")
    for r in range(64):
        g(f"v_mov_b32 v{vSeg(0) + r}, 0")
    g.label("K2_NEXT")
    if st: g("s_add_u32 s101, s101, 5")
    g(f"""
    s_mov_b32 s{sTau}, s{sTn}
    s_branch K2_LOOP
    """)
    g.label("K2_FLEND")
    flush_end(g)
    g(f"s_mov_b32 s{sEndG}, s{sG}")
    stamp(g, 13, st)
    g.label("K2_MAINDONE")
    g("s_setprio 0")
    stamp(g, 5, st)
    g(f"""
    v_mov_b32 v{vTmp(0)}, s{sEndG}
    s_lshl_b32 s59, s{sW}, 2
    s_add_u32 s59, s59, {L_GBASE}
    v_mov_b32 v{vTmp(1)}, s59
    ds_write_b32 v{vTmp(1)}, v{vTmp(0)}
    """)
    vWh = lambda s: 64 + 4 * s
    vHf = lambda s: 128 + 4 * s
    vHr = lambda u: 160 + 2 * u
    vMf = lambda s: 168 + 4 * s
    vAcc = 200
    g(f"""
    s_add_u32 s7, s{sF0}, {FASTMAX}
    s_cmp_lt_u32 s7, s{sTot}
    s_cbranch_scc1 K2_NOEPI
    s_lshr_b32 s96, s{sW}, 2                        ; mt
    s_and_b32 s97, s{sW}, 3                         ; t
    v_lshlrev_b32 v4, 4, v1
    s_lshl_b32 s59, s97, 14
    s_add_u32 s59, s59, {OFF_WHF}
    """)
    for s in range(16):
        g(f"buffer_load_dwordx4 v[{vWh(s)}:{vWh(s)+3}], v4, s[{S_WS}:{S_WS+3}], s59 offen")
        if s < 15:
            g("s_add_u32 s59, s59, 1024")
    g(f"""
    s_lshl_b32 s59, s96, 5
    v_add_u32 v5, s59, v2
    v_add_u32 v6, s{sNB}, v5                        ; node
    v_lshlrev_b32 v6, 8, v6                         ; node*256
    v_lshl_add_u32 v7, v3, 4, v6
    """)
    for s in range(8):
        g(f"buffer_load_dwordx4 v[{vHf(s)}:{vHf(s)+3}], v7, s[{S_H}:{S_H+3}], 0 offen offset:{32 * s}")
    g(f"""
    v_lshl_add_u32 v7, v3, 3, v6
    s_lshl_b32 s60, s97, 6                          ; 64 t
    """)
    for u in range(4):
        g(f"buffer_load_dwordx2 v[{vHr(u)}:{vHr(u)+1}], v7, s[{S_H}:{S_H+3}], s60 offen offset:{16 * u}")
    g.label("K2_NOEPI")
    g(f"""
    s_waitcnt lgkmcnt(0)
    s_barrier
    """)
    g(f"""
    v_lshlrev_b32 v{vTmp(0)}, 4, v0                 ; e*16
    v_mov_b32 v{vTmp(1)}, {L_GBASE}
    ds_read_b128 v[200:203], v{vTmp(1)}
    ds_read_b128 v[204:207], v{vTmp(1)} offset:16
    v_cmp_gt_u32 vcc, 264, v0
    s_and_saveexec_b64 s[62:63], vcc
    s_cbranch_execz K2_red_done
    """)
    for w in range(8):
        g(f"ds_read_b128 v[{168+4*w}:{171+4*w}], v{vTmp(0)} offset:{8192 * w}")
    g(f"""
    v_mul_u32_u24 v{vTmp(2)}, 497, v0
    v_lshrrev_b32 v{vTmp(2)}, 14, v{vTmp(2)}        ; row = e / 33
    s_waitcnt lgkmcnt(0)
    s_mov_b64 s[12:13], exec
    """)
    for w in range(8):
        lab = g.newlabel("K2_red")
        g(f"""
        v_readfirstlane_b32 s100, v{200+w}
        s_cmp_ge_u32 s100, {NG}
        s_cbranch_scc1 {lab}
        s_lshl_b32 s101, s100, 3
        v_add_u32 v{vTmp(3)}, s101, v{vTmp(2)}
        v_cmp_gt_u32 vcc, {BN}, v{vTmp(3)}
        s_and_b64 exec, s[12:13], vcc
        s_cbranch_execz {lab}
        s_mul_i32 s101, s100, {8 * MROW}
        s_add_u32 s101, s101, {L_MACC}
        v_add_u32 v{vTmp(3)}, s101, v{vTmp(0)}
        ds_read_b128 v[208:211], v{vTmp(3)}
        s_waitcnt lgkmcnt(0)
        v_add_f32 v208, v208, v{168+4*w}
        v_add_f32 v209, v209, v{169+4*w}
        v_add_f32 v210, v210, v{170+4*w}
        v_add_f32 v211, v211, v{171+4*w}
        ds_write_b128 v{vTmp(3)}, v[208:211]
        s_waitcnt lgkmcnt(0)
        """)
        g.label(lab)
        g("s_mov_b64 exec, s[12:13]")
    g.label("K2_red_done")
    g(f"""
    s_mov_b64 exec, s[62:63]
    s_waitcnt lgkmcnt(0)
    s_barrier
    s_mov_b32 s{sF0}, s7
    s_cmp_lt_u32 s7, s{sTot}
    s_cbranch_scc1 K2_ROUND
    v_mul_u32_u24 v8, {MROW}, v5
    v_lshl_add_u32 v8, v3, 5, v8
    v_add_u32 v8, {L_MACC}, v8
    s_mov_b32 s61, 0x{NLN2:08x}
    """)
    stamp(g, 6, st)
    if dbg == "macc":
        dump_lds(g, L_MACC, BN * MROW, 32 << 20)
        g("s_branch K2_END")
    for s_ in range(8):
        if s_ == 7: g("s_waitcnt lgkmcnt(8)")
        g(f"""
        ds_read_b128 v[{184 + 8*s_}:{187 + 8*s_}], v8 offset:{64 * s_}
        ds_read_b128 v[{188 + 8*s_}:{191 + 8*s_}], v8 offset:{64 * s_ + 16}
        """)
    for s_ in range(8):
        g(f"s_waitcnt lgkmcnt({2 * (7 - s_)})")
        for k in range(8):
            g(f"v_mul_f32 v{184 + 8*s_ + k}, s61, v{184 + 8*s_ + k}")
        for d in range(4):
            g(f"v_cvt_pk_bf16_f32 v{vMf(s_)+d}, v{184 + 8*s_ + 2*d}, v{184 + 8*s_ + 2*d + 1}")
    g("s_waitcnt vmcnt(0)")
    for s in range(8):
        mfma(g, vAcc, vWh(s), vHf(s), vAcc if s else None)
    for s in range(8):
        mfma(g, vAcc, vWh(8 + s), vMf(s), vAcc)
    g(f"s_mov_b32 s62, 0x{C1:08x}")
    for u in range(4):
        a = vAcc + 4 * u
        g(f"""
        v_cvt_pk_bf16_f32 v216, v{a}, v{a+1}
        v_cvt_pk_bf16_f32 v217, v{a+2}, v{a+3}
        v_lshlrev_b32 v{a}, 16, v216
        v_and_b32 v{a+1}, 0xffff0000, v216
        v_lshlrev_b32 v{a+2}, 16, v217
        v_and_b32 v{a+3}, 0xffff0000, v217
        """)
        for k in range(4):
            g(f"v_mul_f32 v{218+k}, s62, v{a+k}")
        for k in range(4):
            g(f"v_exp_f32 v{218+k}, v{218+k}")
        for k in range(4):
            g(f"v_add_f32 v{218+k}, 1.0, v{218+k}")
        for k in range(4):
            g(f"v_rcp_f32 v{218+k}, v{218+k}")
        for k in range(4):
            g(f"v_mul_f32 v{218+k}, v{a+k}, v{218+k}")
        g(f"""
        v_cvt_pk_bf16_f32 v216, v218, v219
        v_cvt_pk_bf16_f32 v217, v220, v221
        v_lshlrev_b32 v218, 16, v216
        v_and_b32 v219, 0xffff0000, v216
        v_lshlrev_b32 v220, 16, v217
        v_and_b32 v221, 0xffff0000, v217
        v_lshlrev_b32 v222, 16, v{vHr(u)}
        v_and_b32 v223, 0xffff0000, v{vHr(u)}
        v_lshlrev_b32 v224, 16, v{vHr(u)+1}
        v_and_b32 v225, 0xffff0000, v{vHr(u)+1}
        v_add_f32 v218, v218, v222
        v_add_f32 v219, v219, v223
        v_add_f32 v220, v220, v224
        v_add_f32 v221, v221, v225
        v_cvt_pk_bf16_f32 v{226+2*u}, v218, v219
        v_cvt_pk_bf16_f32 v{227+2*u}, v220, v221
        """)
    g(f"""
    v_cmp_gt_u32 vcc, {BN}, v5
    s_and_saveexec_b64 s[62:63], vcc
    s_cbranch_execz K2_nost
    """)
    for u in range(4):
        g(f"buffer_store_dwordx2 v[{226+2*u}:{227+2*u}], v7, s[{S_OUT}:{S_OUT+3}], s60 offen offset:{16 * u}")
    g.label("K2_nost")
    g("s_mov_b64 exec, s[62:63]")
    g(f"""
    s_cmp_lg_u32 s{sW}, 7
    s_cbranch_scc1 K2_END
    v_cmp_gt_u32 vcc, {BN}, v1
    s_and_saveexec_b64 s[62:63], vcc
    v_mul_u32_u24 v4, {MROW}, v1
    v_add_u32 v4, {L_MACC + 512}, v4
    ds_read_b128 v[{vTmp(0)}:{vTmp(3)}], v4
    v_add_u32 v5, s{sNB}, v1
    v_mul_u32_u24 v5, 6, v5
    buffer_load_ushort v{vTmp(4)}, v5, s[{S_POS}:{S_POS+3}], 0 offen
    buffer_load_ushort v{vTmp(5)}, v5, s[{S_POS}:{S_POS+3}], 0 offen offset:2
    buffer_load_ushort v{vTmp(6)}, v5, s[{S_POS}:{S_POS+3}], 0 offen offset:4
    s_mov_b32 s60, 3200000
    s_waitcnt vmcnt(0) lgkmcnt(0)
    """)
    for x in range(3):
        g(f"""
        v_lshlrev_b32 v{vTmp(4+x)}, 16, v{vTmp(4+x)}
        v_fmac_f32 v{vTmp(4+x)}, s61, v{vTmp(x)}
        v_cvt_pk_bf16_f32 v{vTmp(4+x)}, v{vTmp(4+x)}, v{vTmp(4+x)}
        buffer_store_short v{vTmp(4+x)}, v5, s[{S_OUT}:{S_OUT+3}], s60 offen offset:{2 * x}
        """)
    g("s_mov_b64 exec, s[62:63]")
    g("s_branch K2_END")
    g.label("K2_END")
    if st:
        stamp(g, 7, st)
        g(f"""
        s_mov_b64 exec, -1
        s_cmp_ge_u32 s2, {NB}
        s_cbranch_scc1 K2_END2
        v_lshlrev_b32 v4, 2, v1
        s_lshl_b32 s59, s2, 3
        s_add_u32 s59, s59, s{sW}
        s_lshl_b32 s59, s59, 8
        s_add_u32 s59, s59, {48 << 20}
        buffer_store_dword v255, v4, s[{S_WS}:{S_WS+3}], s59 offen
        s_add_u32 s59, s59, {1 << 20}
        buffer_store_dword v254, v4, s[{S_WS}:{S_WS+3}], s59 offen
        """)
        g.label("K2_END2")
    if RT:
        g(f"""
        s_mov_b64 exec, -1
        s_waitcnt vmcnt(0) lgkmcnt(0)
        s_memrealtime s[94:95]
        s_load_dwordx2 s[12:13], s[0:1], 80
        v_mov_b32 v4, v0
        s_waitcnt lgkmcnt(0)
        """)
        srd(g, S_WS, 12, WS_BYTES)
        g(f"""
        v_mov_b32 v2, v255
        v_mov_b32 v3, s94
        s_lshl_b32 s61, s2, 4
        s_add_u32 s61, s61, {57 << 20}
        v_cmp_eq_u32 vcc, 0, v4
        s_and_saveexec_b64 s[62:63], vcc
        s_cbranch_execz K2_END3
        v_mov_b32 v4, 0
        buffer_store_dwordx2 v[2:3], v4, s[{S_WS}:{S_WS+3}], s61 offen
        """)
        g.label("K2_END3")
    g.label("K2_EXIT")
    g("s_endpgm")


def dump_lds(g, lds_off, nbytes, ws_off):
    lab = g.newlabel("dump")
    g(f"""
    s_barrier
    s_lshl_b32 s59, s2, 18
    s_add_u32 s59, s59, {ws_off}
    v_lshlrev_b32 v4, 2, v0
    v_add_u32 v5, {lds_off}, v4
    s_mov_b32 s60, 0
    """)
    g.label(lab)
    g(f"""
    v_add_u32 v6, s60, v5
    v_add_u32 v7, s60, v4
    ds_read_b32 v8, v6
    s_waitcnt lgkmcnt(0)
    buffer_store_dword v8, v7, s[{S_WS}:{S_WS+3}], s59 offen
    s_add_u32 s60, s60, 2048
    s_cmp_lt_u32 s60, {nbytes}
    s_cbranch_scc1 {lab}
    """)


if __name__ == "__main__":
    dbg = sys.argv[2] if len(sys.argv) > 2 else None
    out = sys.argv[1] if len(sys.argv) > 1 else "k.s"
    open(out, "w").write(build(lambda g: k2(g, dbg), k2_lds=163840))
    print("wrote", out)
```

```python
from gen import *
import os
OPT = set(os.environ.get('K2OPT', '').split(','))

L_BST = 0
L_REC = 65536
CAPT = 63
CAP = CAPT * 32
L_META = L_REC + CAP * 16
L_SSC = L_META + CAP * 4
L_MACC = L_SSC + 8 * 2048
MROW = 528
L_AT = L_MACC + BN * MROW
L_LUT = L_AT + NG * 2048
L_GCNT = L_LUT + 128
L_GBASE = L_GCNT + 32
L_BLK = L_GBASE + 32
L_END = L_BLK + 512
assert L_END <= 163840, L_END
FASTMAX = CAP - NG * 31

vRD = lambda s: 4 + s
vCS = lambda j: 12 + j
vI0, vI1 = 20, 24
vWF = lambda t: 28 + 4 * t
vWX = lambda t: 44 + t
vSrd, vSwr, vSz, vMask, vOr, vMetaRd, vMe, vRecS, vRecF, vFl, vTinfo, vFlp = 48, 49, 50, 51, 52, 53, 54, 55, 56, 57, 58, 59
vZero4 = 60
vSeg = lambda t: 64 + 16 * t
vRow = lambda s: 128 + 4 * s
vZa, vZb, vT, vP = 160, 176, 192, 208
vF, vS = 216, 220
vMeta = lambda j: 228 + j
vMeV, vSv, vFaddr, vSwaddr = 236, 237, 238, 239
vTmp = lambda i: 240 + i
vSn = 244
vPay16 = lambda i: 64 + 4 * i
vPay4 = lambda i: 128 + i
vRank = lambda i: 144 + i

S_WS, S_H, S_OUT, S_POS, S_WX = 16, 20, 24, 28, 32
sW, sNB = 36, 37
sTE = lambda g: 38 + g
sT, sTau, sTau1, sG, sNV, sTn, sGn, sNVn, sHas = 46, 47, 48, 49, 50, 51, 52, 53, 54
sBST, sKH, sMHI = 55, 56, 58
sL31 = 14
sEndG = 45
sMaskSlot = lambda i: 64 + 2 * i


def onehot4(g, dst, vx, vlo, vhi):
    for d in range(4):
        g(f"""
        v_cmp_eq_u32 vcc, {2*d}, v{vx}
        v_cndmask_b32 v{dst+d}, 0, v{vlo}, vcc
        v_cmp_eq_u32 vcc, {2*d+1}, v{vx}
        v_cndmask_b32 v{dst+d}, v{dst+d}, v{vhi}, vcc
        """)


def mfma(g, d, a, b, c):
    if 'nomfma' in OPT and d < 200 and d != 72 and d != 88: return
    cs = "0" if c is None else f"v[{c}:{c+15}]"
    g(f"v_mfma_f32_32x32x16_bf16 v[{d}:{d+15}], v[{a}:{a+3}], v[{b}:{b+3}], {cs}")


def zmfma(g, t, z):
    mfma(g, z, vF, vWF(t), None)
    mfma(g, z, vRow(2 * t), vI0, z)
    mfma(g, z, vRow(2 * t + 1), vI1, z)


def silu(g, z, inject=None):
    inject = inject or {}
    if 'nosilu' in OPT:
        for i in range(8): g(f"v_cvt_pk_bf16_f32 v{vP+i}, v{z+2*i}, v{z+2*i+1}")
        for k in sorted(inject): inject[k](g)
        return
    ins = [f"v_exp_f32 v{vT+i}, v{z+i}" for i in range(16)]
    ins += [f"v_pk_add_f32 v[{vT+2*i}:{vT+2*i+1}], v[{vT+2*i}:{vT+2*i+1}], 1.0 op_sel_hi:[1,0]" for i in range(8)]
    ins += [f"v_rcp_f32 v{vT+i}, v{vT+i}" for i in range(16)]
    ins += [f"v_pk_mul_f32 v[{vT+2*i}:{vT+2*i+1}], v[{z+2*i}:{z+2*i+1}], v[{vT+2*i}:{vT+2*i+1}]" for i in range(8)]
    ins += [f"v_cvt_pk_bf16_f32 v{vP+i}, v{vT+2*i}, v{vT+2*i+1}" for i in range(8)]
    for k, l in enumerate(ins):
        if k in inject: inject[k](g)
        g(l)


def segmfma(g, t):
    mfma(g, vSeg(t), vS, vP, vSeg(t))
    mfma(g, vSeg(t), vS + 4, vP + 4, vSeg(t))


def prep_reads(g, st):
    g(f"""
    s_lshl_b32 s59, s{st}, 7
    s_lshl_b32 s60, s{st}, 9
    v_add_u32 v{vTmp(0)}, s59, v{vMetaRd}
    v_add_u32 v{vTmp(1)}, s59, v{vMe}
    v_add_u32 v{vTmp(2)}, s60, v{vRecS}
    ds_read_b128 v[{vMeta(0)}:{vMeta(3)}], v{vTmp(0)}
    ds_read_b128 v[{vMeta(4)}:{vMeta(7)}], v{vTmp(0)} offset:16
    ds_read_b32 v{vMeV}, v{vTmp(1)}
    ds_read_b32 v{vSv}, v{vTmp(2)}
    """)


def prep_zero(g):
    if 'nosbuild' in OPT: return
    g(f"""
    ds_write_b128 v{vSz}, v[{vZero4}:{vZero4+3}]
    ds_write_b128 v{vSz}, v[{vZero4}:{vZero4+3}] offset:1024
    """)


def prep_issue(g, st, snv):
    g(f"v_and_or_b32 v{vMeta(0)}, v{vMeta(0)}, s{sMHI}, v{vCS(0)}")
    for j in range(8):
        if 'nodma' in OPT: break
        g(f"s_add_u32 m0, s{sBST}, {1024 * j}")
        if j < 7:
            g(f"v_and_or_b32 v{vMeta(j+1)}, v{vMeta(j+1)}, s{sMHI}, v{vCS(j+1)}")
        g(f"buffer_load_dwordx4 v{vMeta(j)}, s[{S_WS}:{S_WS+3}], 0 offen lds")
    g(f"""
    v_and_b32 v{vTmp(0)}, 7, v{vMeV}                          ; slot
    s_mov_b32 s59, {L_LUT}
    v_lshl_add_u32 v{vTmp(1)}, v{vTmp(0)}, 4, s59
    s_lshl_b32 s60, s{st}, 9
    v_add_u32 v{vTmp(2)}, s60, v{vRecF}
    v_cndmask_b32 v{vFaddr}, v{vTmp(1)}, v{vTmp(2)}, s[{sKH}:{sKH+1}]
    v_lshl_add_u32 v{vSwaddr}, v{vTmp(0)}, 8, v{vSwr}
    v_and_or_b32 v{vSv}, v{vSv}, v{vMask}, v{vOr}
    v_cmp_gt_u32 vcc, s{snv}, v2
    s_mov_b64 exec, vcc
    ds_write_b16 v{vSwaddr}, v{vSv}
    ds_write_b16_d16_hi v{vSwaddr}, v{vSv} offset:64
    s_mov_b64 exec, -1
    """ if 'nosbuild' not in OPT else "")


def load_wf(g, sg=None):
    sg = sG if sg is None else sg
    g(f"""
    s_lshl_b32 s59, s{sg}, 11
    s_add_u32 s59, s59, {L_AT}
    v_lshlrev_b32 v{vTmp(0)}, 4, v2
    v_add_u32 v{vTmp(0)}, s59, v{vTmp(0)}
    s_mov_b64 exec, 0xffffffff
    """)
    for t in range(4):
        g(f"ds_read_b128 v[{vWF(t)}:{vWF(t)+3}], v{vTmp(0)} offset:{512 * t}")
    g("s_mov_b64 exec, -1")


def flush_common(g):
    for i in range(4):
        for x in range(1, 4):
            d = vT + 3 * i + (x - 1)
            g(f"v_mul_f32 v{d}, v{vWX(0)}, v{vSeg(0) + 4*i + x}")
            for t in range(1, 4):
                g(f"v_fmac_f32 v{d}, v{vWX(t)}, v{vSeg(t) + 4*i + x}")
    for sh in (1, 2, 4, 8):
        for k in range(12):
            g(f"v_add_f32_dpp v{vT+k}, v{vT+k}, v{vT+k} row_shr:{sh} row_mask:0xf bank_mask:0xf bound_ctrl:0")
    for k in range(12):
        g(f"v_add_f32_dpp v{vT+k}, v{vT+k}, v{vT+k} row_bcast:15 row_mask:0xa bank_mask:0xf")


def flush_mid(g):
    flush_common(g)
    g(f"""
    s_mul_i32 s59, s{sG}, {8 * MROW}
    v_add_u32 v{vTmp(0)}, s59, v{vFl}
    v_add_u32 v{vTmp(1)}, s59, v{vFlp}
    """)
    pt = lambda k: (vP + k) if k < 8 else vMeta(k - 8)
    for t in range(4):
        for i in range(4):
            g(f"ds_read_b32 v{vZb + 4*t + i}, v{vTmp(0)} offset:{2 * i * MROW + 128 * t}")
            if 4 * t + i == 13: g("s_waitcnt lgkmcnt(6)")
    g(f"s_mov_b64 exec, s[{sL31}:{sL31+1}]")
    for i in range(4):
        for x in range(3):
            g(f"ds_read_b32 v{pt(3*i + x)}, v{vTmp(1)} offset:{2 * i * MROW + 512 + 4 * x}")
    g("s_waitcnt lgkmcnt(0)")
    for i in range(4):
        for x in range(3):
            g(f"v_add_f32 v{pt(3*i + x)}, v{pt(3*i + x)}, v{vT + 3*i + x}")
    for i in range(4):
        for x in range(3):
            g(f"ds_write_b32 v{vTmp(1)}, v{pt(3*i + x)} offset:{2 * i * MROW + 512 + 4 * x}")
    g("s_mov_b64 exec, -1")
    for t in range(4):
        for i in range(4):
            g(f"v_add_f32 v{vZb + 4*t + i}, v{vZb + 4*t + i}, v{vSeg(t) + 4*i}")
    g("s_waitcnt lgkmcnt(2)")
    for t in range(4):
        for i in range(4):
            g(f"ds_write_b32 v{vTmp(0)}, v{vZb + 4*t + i} offset:{2 * i * MROW + 128 * t}")


def flush_end(g):
    flush_common(g)
    g(f"""
    s_sub_u32 s59, s{sBST}, {L_MACC}
    v_add_u32 v{vTmp(0)}, s59, v{vFl}
    v_add_u32 v{vTmp(1)}, s59, v{vFlp}
    """)
    for t in range(4):
        for i in range(4):
            g(f"ds_write_b32 v{vTmp(0)}, v{vSeg(t) + 4*i} offset:{2 * i * MROW + 128 * t}")
    g(f"s_mov_b64 exec, s[{sL31}:{sL31+1}]")
    for i in range(4):
        for x in range(3):
            g(f"ds_write_b32 v{vTmp(1)}, v{vT + 3*i + x} offset:{2 * i * MROW + 512 + 4 * x}")
    g("s_mov_b64 exec, -1")


def stamp(g, k, on):
    if on:
        g(f"""
        s_memtime s[98:99]
        s_waitcnt lgkmcnt(0)
        v_writelane_b32 v255, s98, {k}
        """)


def istamp(g, k, on):
    if on and ISTAMP_ON:
        g(f"""
        s_memtime s[98:99]
        s_add_u32 s100, s101, {k}
        s_waitcnt lgkmcnt(0)
        s_mov_b32 m0, s100
        v_writelane_b32 v254, s98, m0
        """)


def k2(g, dbg=None):
    st = dbg == "time"
    global ISTAMP_ON
    ISTAMP_ON = 'noistamp' not in OPT
    g.label(K2)
    if RT: g("s_memrealtime s[92:93]")
    g(f"""
    s_cmp_ge_u32 s2, {NB}
    s_cbranch_scc1 K2_EXIT
    s_load_dwordx2 s[4:5], s[0:1], 0
    s_load_dwordx2 s[6:7], s[0:1], 8
    s_load_dwordx2 s[8:9], s[0:1], 48
    s_load_dwordx2 s[10:11], s[0:1], 64
    s_load_dwordx2 s[12:13], s[0:1], 80
    v_and_b32 v1, 63, v0
    v_and_b32 v2, 31, v1
    v_lshrrev_b32 v3, 5, v1
    v_lshrrev_b32 v192, 6, v0
    v_readfirstlane_b32 s{sW}, v192
    s_mul_i32 s{sNB}, s2, {BN}
    s_waitcnt lgkmcnt(0)
    """)
    if RT: g("v_mov_b32 v255, s92")
    stamp(g, 0, st)
    srd(g, S_H, 4, N * 256)
    srd(g, S_POS, 6, N * 6)
    srd(g, S_WX, 8, 256)
    srd(g, S_OUT, 10, 1637500 * 2)
    srd(g, S_WS, 12, WS_BYTES)
    vTt = lambda r: vTmp(1 + r)
    L_IDX = 0
    sF0, sTot, sNR = 4, 5, 6
    g(f"""
    s_lshl_b32 s59, s2, 10
    s_add_u32 s59, s59, {OFF_TAB}
    v_lshlrev_b32 v194, 2, v1                       ; lane*4
    v_lshlrev_b32 v195, 4, v1                       ; lane*16
    buffer_load_dword v{vTt(0)}, v194, s[{S_WS}:{S_WS+3}], s59 offen
    buffer_load_dword v{vTt(1)}, v194, s[{S_WS}:{S_WS+3}], s59 offen offset:256
    buffer_load_dword v{vTt(2)}, v194, s[{S_WS}:{S_WS+3}], s59 offen offset:512
    buffer_load_dword v{vTt(3)}, v194, s[{S_WS}:{S_WS+3}], s59 offen offset:768
    s_mul_i32 s61, s2, {NG * 2048}
    s_add_u32 s61, s61, {OFF_AT}
    s_lshl_b32 s62, s{sW}, 10
    s_add_u32 s63, s61, s62
    s_add_u32 m0, s62, {L_AT}
    buffer_load_dwordx4 v195, s[{S_WS}:{S_WS+3}], s63 offen lds
    s_cmp_ge_u32 s{sW}, {2 * NG - 8}
    s_cbranch_scc1 K2_noat2
    s_add_u32 s63, s63, 8192
    s_add_u32 m0, s62, {L_AT + 8192}
    buffer_load_dwordx4 v195, s[{S_WS}:{S_WS+3}], s63 offen lds
    """)
    g.label("K2_noat2")
    g(f"""
    v_lshlrev_b32 v193, 4, v2                       ; n*16
    s_mov_b32 s59, {OFF_WF5}
    """)
    for t in range(4):
        g(f"buffer_load_dwordx4 v[{vWF(t)}:{vWF(t)+3}], v193, s[{S_WS}:{S_WS+3}], s59 offen offset:{512 * t}")
    g("v_lshlrev_b32 v193, 1, v2")
    for t in range(4):
        g(f"buffer_load_ushort v{vWX(t)}, v193, s[{S_WX}:{S_WX+3}], 0 offen offset:{64 * t}")
    g(f"""
    s_lshl_b32 s{sBST}, s{sW}, 13
    s_mov_b32 s{sKH}, 0
    s_mov_b32 s{sKH+1}, -1
    s_mov_b32 s{sMHI}, 0xffffff00
    s_mov_b32 s{sL31}, 0x80000000
    s_mov_b32 s{sL31+1}, 0x80000000
    v_mov_b32 v{vZero4}, 0
    v_mov_b32 v{vZero4+1}, 0
    v_mov_b32 v{vZero4+2}, 0
    v_mov_b32 v{vZero4+3}, 0
    v_and_b32 v192, 7, v2
    v_lshlrev_b32 v192, 2, v192
    v_lshrrev_b32 v193, 3, v2
    v_add_u32 v192, v192, v193
    v_lshlrev_b32 v192, 8, v192
    v_add_u32 v192, s{sBST}, v192
    v_and_b32 v193, 15, v2                          ; m&15
    """)
    for s_ in range(8):
        g(f"""
        v_add_u32 v194, {2*s_}, v3
        v_xor_b32 v194, v194, v193
        v_lshl_add_u32 v{vRD(s_)}, v194, 4, v192
        """)
    g("""
    v_and_b32 v193, 15, v1
    v_bfe_u32 v194, v1, 4, 1
    v_lshlrev_b32 v194, 3, v194
    v_xor_b32 v193, v193, v194
    """)
    for j in range(8):
        g(f"""
        v_xor_b32 v194, {j}, v193
        v_lshlrev_b32 v{vCS(j)}, 4, v194
        """)
    g(f"""
    v_mov_b32 v196, 0x3f80
    v_mov_b32 v197, 0x3f800000
    v_lshlrev_b32 v192, 3, v3
    v_sub_u32 v192, v2, v192                          ; n - 8kh
    """)
    onehot4(g, vI0, 192, 196, 197)
    g("v_subrev_u32 v192, 16, v192")
    onehot4(g, vI1, 192, 196, 197)
    g(f"""
    s_lshl_b32 s59, s{sW}, 11
    s_add_u32 s59, s59, {L_SSC}
    v_lshlrev_b32 v192, 6, v2
    v_lshl_add_u32 v192, v3, 4, v192
    v_add_u32 v{vSrd}, s59, v192                    ; m*64 + kh*16
    v_lshlrev_b32 v192, 4, v1
    v_add_u32 v{vSz}, s59, v192
    v_lshrrev_b32 v192, 4, v2
    v_lshlrev_b32 v192, 5, v192
    v_bfe_u32 v193, v2, 2, 1
    v_lshl_add_u32 v192, v193, 4, v192
    v_bfe_u32 v193, v2, 3, 1
    v_lshl_add_u32 v192, v193, 3, v192
    v_and_b32 v193, 3, v2
    v_lshl_add_u32 v192, v193, 1, v192
    v_lshl_add_u32 v192, v3, 7, v192
    v_add_u32 v{vSwr}, s59, v192
    v_mov_b32 v192, 0xffff0000
    v_mov_b32 v193, -1
    v_cndmask_b32 v{vMask}, v192, v193, s[{sKH}:{sKH+1}]
    v_mov_b32 v193, 0
    v_cndmask_b32 v{vOr}, v196, v193, s[{sKH}:{sKH+1}]
    v_lshrrev_b32 v192, 4, v1
    v_lshlrev_b32 v192, 5, v192
    v_add_u32 v{vMetaRd}, {L_META}, v192
    v_lshlrev_b32 v192, 2, v2
    v_add_u32 v{vMe}, {L_META}, v192
    v_lshlrev_b32 v192, 4, v2
    v_add_u32 v{vRecF}, {L_REC}, v192
    v_lshlrev_b32 v193, 2, v3
    v_add3_u32 v{vRecS}, v{vRecF}, v193, 8
    v_mul_u32_u24 v192, {MROW}, v3
    v_add_u32 v{vFlp}, {L_MACC}, v192
    v_lshlrev_b32 v193, 2, v2
    v_add_u32 v{vFl}, v{vFlp}, v193
    """)
    g(f"""
    v_lshlrev_b32 v192, 4, v0
    v_add_u32 v192, {L_MACC}, v192
    ds_write_b128 v192, v[{vZero4}:{vZero4+3}]
    ds_write_b128 v192, v[{vZero4}:{vZero4+3}] offset:8192
    ds_write_b128 v192, v[{vZero4}:{vZero4+3}] offset:16384
    v_cmp_gt_u32 vcc, {(BN * MROW - 24576) // 16}, v0
    s_and_saveexec_b64 s[62:63], vcc
    s_cbranch_execz K2_z1
    ds_write_b128 v192, v[{vZero4}:{vZero4+3}] offset:24576
    """)
    g.label("K2_z1")
    g(f"""
    s_mov_b64 exec, s[62:63]
    s_cmp_lg_u32 s{sW}, 0
    s_cbranch_scc1 K2_z2
    """)
    onehot4(g, 204, 1, 196, 197)
    g(f"""
    v_cmp_gt_u32 vcc, 8, v1
    s_and_saveexec_b64 s[62:63], vcc
    v_lshlrev_b32 v192, 4, v1
    v_add_u32 v192, {L_LUT}, v192
    ds_write_b128 v192, v[204:207]
    s_mov_b64 exec, s[62:63]
    """)
    g.label("K2_z2")
    stamp(g, 1, st)
    g("s_waitcnt vmcnt(9)")
    stamp(g, 14, st)
    vCn = lambda r: 208 + r
    vSc = lambda r: 212 + r
    vOff, vCnt, vGb = 216, 217, 253
    for r in range(4):
        g(f"v_lshrrev_b32 v{vCn(r)}, 16, v{vTt(r)}")
    g(f"""
    v_cmp_gt_u32 vcc, {P - 192}, v1
    v_cndmask_b32 v{vCn(3)}, 0, v{vCn(3)}, vcc
    """)
    for r in range(4):
        g(f"v_mov_b32 v{vSc(r)}, v{vCn(r)}")
    for mod in ("row_shr:1 row_mask:0xf bank_mask:0xf bound_ctrl:0", "row_shr:2 row_mask:0xf bank_mask:0xf bound_ctrl:0",
                "row_shr:4 row_mask:0xf bank_mask:0xf bound_ctrl:0", "row_shr:8 row_mask:0xf bank_mask:0xf bound_ctrl:0",
                "row_bcast:15 row_mask:0xa bank_mask:0xf", "row_bcast:31 row_mask:0xc bank_mask:0xf"):
        for r in range(4):
            g(f"v_add_u32_dpp v{vSc(r)}, v{vSc(r)}, v{vSc(r)} {mod}")
    g(f"""
    v_readlane_b32 s59, v{vSc(0)}, 63
    v_readlane_b32 s60, v{vSc(1)}, 63
    v_readlane_b32 s61, v{vSc(2)}, 63
    v_readlane_b32 s62, v{vSc(3)}, 63
    s_add_u32 s60, s60, s59                         ; tot0+tot1
    s_add_u32 s61, s61, s60
    s_add_u32 s{sTot}, s62, s61
    v_mov_b32 v{vCnt}, 0
    v_mov_b32 v{vOff}, 0
    v_mov_b32 v{vGb}, 0
    """)
    for r in range(4):
        lab = g.newlabel("K2_sel")
        pre = ["0", "s59", "s60", "s61"][r]
        g(f"""
        s_cmp_lg_u32 s{sW}, {r}
        s_cbranch_scc1 {lab}
        v_mov_b32 v{vCnt}, v{vCn(r)}
        v_sub_u32 v{vOff}, v{vSc(r)}, v{vCn(r)}
        v_add_u32 v{vOff}, {pre}, v{vOff}
        v_add_u32 v192, {64 * r}, v1
        v_mul_u32_u24 v192, {C}, v192
        v_and_b32 v{vGb}, 0xffff, v{vTt(r)}
        v_add_u32 v{vGb}, v{vGb}, v192
        """)
        g.label(lab)
    g(f"v_lshl_or_b32 v252, v{vOff}, 11, v{vCnt}")
    if 'noprefetch' not in OPT:
        g(f"""
        v_lshlrev_b32 v192, 4, v{vGb}
        s_mov_b32 s59, {OFF_P16}
        buffer_load_dword v236, v192, s[{S_WS}:{S_WS+3}], s59 offen
        v_lshlrev_b32 v192, 2, v{vGb}
        s_mov_b32 s59, {OFF_P4}
        buffer_load_dword v237, v192, s[{S_WS}:{S_WS+3}], s59 offen
        """)
    g(f"s_mov_b32 s{sF0}, 0")
    stamp(g, 15, st)
    g.label("K2_ROUND")
    g(f"""
    s_mov_b32 s{sEndG}, 7
    s_sub_u32 s{sNR}, s{sTot}, s{sF0}
    s_min_u32 s{sNR}, s{sNR}, {FASTMAX}
    v_and_b32 v192, 7, v1
    v_lshlrev_b32 v192, 2, v192
    v_add_u32 v192, {L_GCNT}, v192
    ds_write_b32 v192, v{vZero4}
    v_lshrrev_b32 v{vOff}, 11, v252
    v_and_b32 v{vCnt}, 0x7ff, v252
    v_subrev_u32 v192, v{vOff}, v{vZero4}
    v_add_u32 v192, s{sF0}, v192
    v_med3_i32 v193, v192, 0, v{vCnt}               ; k0
    v_add_u32 v192, {FASTMAX}, v192
    v_med3_i32 v194, v192, 0, v{vCnt}               ; k1
    v_add_u32 v196, v{vOff}, v193
    v_subrev_u32 v196, s{sF0}, v196
    v_lshlrev_b32 v196, 2, v196
    v_add_u32 v197, v{vGb}, v193                    ; value
    """)
    g.label("K2_EXP")
    g(f"""
    v_cmp_lt_u32 vcc, v193, v194
    s_and_b64 exec, exec, vcc
    s_cbranch_execz K2_EXPD
    ds_write_b32 v196, v197 offset:{L_IDX}
    v_add_u32 v193, 1, v193
    v_add_u32 v196, 4, v196
    v_add_u32 v197, 1, v197
    s_branch K2_EXP
    """)
    g.label("K2_EXPD")
    g(f"""
    s_mov_b64 exec, -1
    s_waitcnt lgkmcnt(0)
    s_barrier
    v_lshlrev_b32 v192, 2, v0
    """)
    stamp(g, 2, st)
    NS = 4
    for j in range(NS):
        g(f"ds_read_b32 v{vRank(j)}, v192 offset:{L_IDX + 2048 * j}")
    g(f"""
    s_mov_b32 s59, {OFF_P16}
    s_mov_b32 s60, {OFF_P4}
    s_waitcnt lgkmcnt(0)
    """)
    for j in range(NS):
        mk = sMaskSlot(j)
        g(f"""
        s_sub_u32 s61, s{sNR}, {512 * j}
        s_max_i32 s61, s61, 0
        v_cmp_gt_u32 s[{mk}:{mk+1}], s61, v0
        v_lshlrev_b32 v196, 4, v{vRank(j)}
        v_lshlrev_b32 v197, 2, v{vRank(j)}
        s_mov_b64 exec, s[{mk}:{mk+1}]
        buffer_load_dword v{vPay4(j)}, v197, s[{S_WS}:{S_WS+3}], s60 offen
        buffer_load_dwordx4 v[{vPay16(j)}:{vPay16(j)+3}], v196, s[{S_WS}:{S_WS+3}], s59 offen
        s_mov_b64 exec, -1
        """)
    g(f"""
    v_mov_b32 v192, 1
    s_mov_b32 s59, {L_GCNT}
    """)
    for j in range(NS):
        mk = sMaskSlot(j)
        g(f"""
        s_waitcnt vmcnt({2 * (NS - 1 - j) + 1})
        v_bfe_u32 v193, v{vPay4(j)}, 3, 3
        v_lshl_add_u32 v193, v193, 2, s59
        s_mov_b64 exec, s[{mk}:{mk+1}]
        ds_add_rtn_u32 v{vRank(j)}, v193, v192
        s_mov_b64 exec, -1
        """)
    stamp(g, 16, st)
    g(f"""
    s_waitcnt lgkmcnt(0)
    s_barrier
    v_and_b32 v192, 7, v1
    v_lshlrev_b32 v192, 2, v192
    v_add_u32 v193, {L_GCNT}, v192
    ds_read_b32 v196, v193
    s_waitcnt lgkmcnt(0)
    """)
    stamp(g, 3, st)
    g("s_mov_b32 s96, 0")
    vVe, vBase = 198, 199
    for gi in range(NG):
        g(f"""
        v_readlane_b32 s97, v196, {gi}
        v_writelane_b32 v{vBase}, s96, {gi}
        s_add_u32 s98, s96, s97
        v_writelane_b32 v{vVe}, s98, {gi}
        s_add_u32 s96, s98, 31
        s_and_b32 s96, s96, 0xffffffe0
        s_lshr_b32 s{sTE(gi)}, s96, 5
        """)
    g(f"""
    s_mov_b32 s{sT}, s{sTE(NG-1)}
    v_cmp_gt_u32 vcc, 8, v1
    v_add_u32 v193, {L_GBASE}, v192
    s_mov_b64 exec, vcc
    ds_write_b32 v193, v{vBase}
    s_mov_b64 exec, -1
    v_mov_b32 v200, 0
    """)
    for gi in range(NG - 1):
        g(f"""
        v_cmp_le_u32 vcc, s{sTE(gi)}, v1
        v_addc_co_u32 v200, vcc, 0, v200, vcc
        """)
    g(f"""
    v_lshlrev_b32 v201, 2, v200
    ds_bpermute_b32 v201, v201, v{vVe}
    v_lshlrev_b32 v202, 5, v1
    s_mov_b32 s59, {L_GBASE}
    s_mov_b32 s60, {L_REC}
    s_mov_b32 s61, {L_META}
    """)
    vBs = lambda i: vZa + i
    for j in range(NS):
        g(f"""
        v_bfe_u32 v193, v{vPay4(j)}, 3, 3
        v_lshl_add_u32 v193, v193, 2, s59
        ds_read_b32 v{vBs(j)}, v193
        """)
    g(f"""
    s_waitcnt vmcnt(0) lgkmcnt(0)
    s_cmp_lg_u32 s{sF0}, 0
    s_cbranch_scc1 K2_nowx
    v_lshlrev_b32 v{vWX(0)}, 16, v{vWX(0)}
    v_lshlrev_b32 v{vWX(1)}, 16, v{vWX(1)}
    v_lshlrev_b32 v{vWX(2)}, 16, v{vWX(2)}
    v_lshlrev_b32 v{vWX(3)}, 16, v{vWX(3)}
    """)
    g.label("K2_nowx")
    g(f"""
    v_sub_u32 v201, v201, v202
    v_min_u32 v201, 32, v201
    v_lshl_or_b32 v{vTinfo}, v201, 8, v200
    """)
    for j in range(NS):
        mk = sMaskSlot(j)
        g(f"""
        v_add_u32 v194, v{vBs(j)}, v{vRank(j)}
        v_and_b32 v195, 0xffffff07, v{vPay4(j)}
        v_lshl_add_u32 v192, v194, 4, s60
        v_lshl_add_u32 v193, v194, 2, s61
        s_mov_b64 exec, s[{mk}:{mk+1}]
        ds_write_b128 v192, v[{vPay16(j)}:{vPay16(j)+3}]
        ds_write_b32 v193, v195
        s_mov_b64 exec, -1
        """)
    stamp(g, 17, st)
    g(f"""
    s_cmp_ge_u32 s{sW}, {NG}
    s_cbranch_scc1 K2_nopad
    v_readlane_b32 s96, v{vVe}, s{sW}
    s_add_u32 s97, s96, 31
    s_and_b32 s97, s97, 0xffffffe0
    v_add_u32 v194, s96, v1
    v_cmp_gt_u32 vcc, s97, v194
    s_and_saveexec_b64 s[62:63], vcc
    s_cbranch_execz K2_nopad2
    v_lshl_add_u32 v192, v194, 4, s60
    ds_write_b128 v192, v[{vZero4}:{vZero4+3}]
    v_lshl_add_u32 v192, v194, 2, s61
    ds_write_b32 v192, v{vZero4}
    """)
    g.label("K2_nopad2")
    g("s_mov_b64 exec, s[62:63]")
    g.label("K2_nopad")
    g(f"""
    s_waitcnt vmcnt(0) lgkmcnt(0)
    s_barrier
    """)
    stamp(g, 4, st)
    sH1, sH2, sG1, sNV2 = sHas, 61, sGn, sNVn
    def read_ops(g, sdst):
        if 'noreads' in OPT: return
        for s_ in range(8):
            g(f"ds_read_b128 v[{vRow(s_)}:{vRow(s_)+3}], v{vRD(s_)}")
        g(f"""
        ds_read_b128 v[{vF}:{vF+3}], v{vFaddr}
        ds_read_b128 v[{sdst}:{sdst+3}], v{vSrd}
        ds_read_b128 v[{sdst+4}:{sdst+7}], v{vSrd} offset:32
        """)
    g(f"""
    s_mul_i32 s59, s{sT}, s{sW}
    s_lshr_b32 s{sTau}, s59, 3
    s_add_u32 s59, s59, s{sT}
    s_lshr_b32 s{sTau1}, s59, 3
    s_cmp_ge_u32 s{sTau}, s{sTau1}
    s_cbranch_scc1 K2_MAINDONE
    v_readlane_b32 s59, v{vTinfo}, s{sTau}
    s_and_b32 s{sG}, s59, 0xff
    s_lshr_b32 s{sNV}, s59, 8
    """)
    prep_reads(g, sTau)
    prep_zero(g)
    g("s_waitcnt lgkmcnt(0)")
    prep_issue(g, sTau, sNV)
    load_wf(g)
    for r in range(0, 64, 2):
        g(f"v_pk_mov_b32 v[{vSeg(0) + r}:{vSeg(0) + r + 1}], 0, 0")
    g("s_waitcnt vmcnt(0)")
    read_ops(g, vS)
    g(f"""
    s_add_u32 s{sTn}, s{sTau}, 1
    s_cmp_ge_u32 s{sTn}, s{sTau1}
    s_cbranch_scc1 K2_I1
    v_readlane_b32 s59, v{vTinfo}, s{sTn}
    s_lshr_b32 s{sNV}, s59, 8
    """)
    prep_reads(g, sTn)
    g("s_waitcnt lgkmcnt(4)")
    prep_zero(g)
    g("s_waitcnt lgkmcnt(2)")
    prep_issue(g, sTn, sNV)
    g.label("K2_I1")
    g("s_waitcnt lgkmcnt(0)")
    zmfma(g, 0, vZa)
    if st: g("s_mov_b32 s101, 0")
    g.label("K2_LOOP")
    istamp(g, 0, st)
    g(f"""
    s_add_u32 s{sTn}, s{sTau}, 1
    s_cmp_lt_u32 s{sTn}, s{sTau1}
    s_cselect_b32 s{sH1}, 1, 0
    s_min_u32 s59, s{sTn}, 63
    v_readlane_b32 s59, v{vTinfo}, s59
    s_add_u32 s62, s{sTau}, 2
    s_cmp_lt_u32 s62, s{sTau1}
    s_cselect_b32 s{sH2}, 1, 0
    s_min_u32 s62, s62, 63
    v_readlane_b32 s60, v{vTinfo}, s62
    s_and_b32 s{sG1}, s59, 0xff
    s_lshr_b32 s{sNV2}, s60, 8
    """)
    if 'noprio' not in OPT:
        g(f"""
        s_sub_u32 s62, s{sTau1}, s{sTau}
        s_cmp_ge_u32 s62, 6
        s_cbranch_scc1 K2_P3
        s_cmp_ge_u32 s62, 4
        s_cbranch_scc1 K2_P2
        s_cmp_ge_u32 s62, 2
        s_cbranch_scc1 K2_P1
        s_setprio 0
        s_branch K2_PD
        """)
        g.label("K2_P1")
        g("s_setprio 1")
        g("s_branch K2_PD")
        g.label("K2_P2")
        g("s_setprio 2")
        g("s_branch K2_PD")
        g.label("K2_P3")
        g("s_setprio 3")
        g.label("K2_PD")
    def zm(t, z, k):
        if k == 0: return lambda g: mfma(g, z, vF, vWF(t), None)
        if k == 1: return lambda g: mfma(g, z, vRow(2 * t), vI0, z)
        return lambda g: mfma(g, z, vRow(2 * t + 1), vI1, z)
    def sg(t, k):
        return (lambda g: mfma(g, vSeg(t), vS, vP, vSeg(t))) if k == 0 else (lambda g: mfma(g, vSeg(t), vS + 4, vP + 4, vSeg(t)))
    silu(g, vZa, {1: zm(1, vZb, 0), 5: zm(1, vZb, 1), 9: zm(1, vZb, 2)})
    istamp(g, 1, st)
    def inj_pr(g):
        lab = g.newlabel("K2_pr")
        g(f"""
        s_cmp_eq_u32 s{sH2}, 0
        s_cbranch_scc1 {lab}
        s_add_u32 s62, s{sTau}, 2
        """)
        prep_reads(g, 62)
        g.label(lab)
    silu(g, vZb, {1: sg(0, 0), 5: sg(0, 1), 9: zm(2, vZa, 0), 13: zm(2, vZa, 1), 25: zm(2, vZa, 2), 32: inj_pr})
    istamp(g, 2, st)
    def inj_b2(g):
        lab = g.newlabel("K2_b2")
        g(f"""
        s_cmp_eq_u32 s{sH1}, 0
        s_cbranch_scc1 {lab}
        s_waitcnt vmcnt(0)
        """)
        read_ops(g, vSn)
        g.label(lab)
    def inj_dma(g):
        lab = g.newlabel("K2_dm")
        g(f"""
        s_cmp_eq_u32 s{sH2}, 0
        s_cbranch_scc1 {lab}
        s_waitcnt lgkmcnt(0)
        """)
        prep_zero(g)
        g(f"s_add_u32 s62, s{sTau}, 2")
        prep_issue(g, 62, sNV2)
        g.label(lab)
    silu(g, vZa, {1: sg(1, 0), 5: sg(1, 1), 9: zm(3, vZb, 0), 13: zm(3, vZb, 1), 25: zm(3, vZb, 2), 36: inj_b2, 50: inj_dma})
    istamp(g, 3, st)
    g(f"""
    s_cmp_eq_u32 s{sH1}, 0
    s_cbranch_scc1 K2_B3C
    s_cmp_eq_u32 s{sG1}, s{sG}
    s_cbranch_scc1 K2_B3B
    """)
    load_wf(g, sG1)
    g.label("K2_B3B")
    g.label("K2_B3C")
    g("s_waitcnt lgkmcnt(0)")
    silu(g, vZb, {1: sg(2, 0), 5: sg(2, 1), 9: zm(0, vZa, 0), 13: zm(0, vZa, 1), 25: zm(0, vZa, 2)})
    segmfma(g, 3)
    istamp(g, 4, st)
    g(f"""
    s_cmp_eq_u32 s{sH1}, 0
    s_cbranch_scc1 K2_FLEND
    """)
    for r in range(8):
        g(f"v_mov_b32 v{vS + r}, v{vSn + r}")
    g(f"""
    s_cmp_eq_u32 s{sG1}, s{sG}
    s_cbranch_scc1 K2_NEXT
    """)
    flush_mid(g)
    g(f"s_mov_b32 s{sG}, s{sG1}")
    for r in range(0, 64, 2):
        g(f"v_pk_mov_b32 v[{vSeg(0) + r}:{vSeg(0) + r + 1}], 0, 0")
    g.label("K2_NEXT")
    if st: g("s_add_u32 s101, s101, 5")
    g(f"""
    s_mov_b32 s{sTau}, s{sTn}
    s_branch K2_LOOP
    """)
    g.label("K2_FLEND")
    flush_end(g)
    g(f"s_mov_b32 s{sEndG}, s{sG}")
    stamp(g, 13, st)
    g.label("K2_MAINDONE")
    g("s_setprio 0")
    stamp(g, 5, st)
    g(f"""
    v_mov_b32 v{vTmp(0)}, s{sEndG}
    s_lshl_b32 s59, s{sW}, 2
    s_add_u32 s59, s59, {L_GBASE}
    v_mov_b32 v{vTmp(1)}, s59
    ds_write_b32 v{vTmp(1)}, v{vTmp(0)}
    """)
    vWh = lambda s: 64 + 4 * s
    vHf = lambda s: 128 + 4 * s
    vHr = lambda u: 160 + 2 * u
    vMf = lambda s: 168 + 4 * s
    vAcc = 200
    g(f"""
    s_add_u32 s7, s{sF0}, {FASTMAX}
    s_cmp_lt_u32 s7, s{sTot}
    s_cbranch_scc1 K2_NOEPI
    s_lshr_b32 s96, s{sW}, 2                        ; mt
    s_and_b32 s97, s{sW}, 3                         ; t
    v_lshlrev_b32 v4, 4, v1
    s_lshl_b32 s59, s97, 14
    s_add_u32 s59, s59, {OFF_WHF}
    """)
    for s in range(16):
        g(f"buffer_load_dwordx4 v[{vWh(s)}:{vWh(s)+3}], v4, s[{S_WS}:{S_WS+3}], s59 offen")
        if s < 15:
            g("s_add_u32 s59, s59, 1024")
    g(f"""
    s_lshl_b32 s59, s96, 5
    v_add_u32 v5, s59, v2
    v_add_u32 v6, s{sNB}, v5                        ; node
    v_lshlrev_b32 v6, 8, v6                         ; node*256
    v_lshl_add_u32 v7, v3, 4, v6
    """)
    for s in range(8):
        g(f"buffer_load_dwordx4 v[{vHf(s)}:{vHf(s)+3}], v7, s[{S_H}:{S_H+3}], 0 offen offset:{32 * s}")
    g(f"""
    v_lshl_add_u32 v7, v3, 3, v6
    s_lshl_b32 s60, s97, 6                          ; 64 t
    """)
    for u in range(4):
        g(f"buffer_load_dwordx2 v[{vHr(u)}:{vHr(u)+1}], v7, s[{S_H}:{S_H+3}], s60 offen offset:{16 * u}")
    g.label("K2_NOEPI")
    g(f"""
    s_waitcnt lgkmcnt(0)
    s_barrier
    """)
    g(f"""
    v_lshlrev_b32 v{vTmp(0)}, 4, v0                 ; e*16
    v_mov_b32 v{vTmp(1)}, {L_GBASE}
    ds_read_b128 v[200:203], v{vTmp(1)}
    ds_read_b128 v[204:207], v{vTmp(1)} offset:16
    v_cmp_gt_u32 vcc, 264, v0
    s_and_saveexec_b64 s[62:63], vcc
    s_cbranch_execz K2_red_done
    """)
    for w in range(8):
        g(f"ds_read_b128 v[{168+4*w}:{171+4*w}], v{vTmp(0)} offset:{8192 * w}")
    g(f"""
    v_mul_u32_u24 v{vTmp(2)}, 497, v0
    v_lshrrev_b32 v{vTmp(2)}, 14, v{vTmp(2)}        ; row = e / 33
    s_waitcnt lgkmcnt(0)
    s_mov_b64 s[12:13], exec
    """)
    for w in range(8):
        lab = g.newlabel("K2_red")
        g(f"""
        v_readfirstlane_b32 s100, v{200+w}
        s_cmp_ge_u32 s100, {NG}
        s_cbranch_scc1 {lab}
        s_lshl_b32 s101, s100, 3
        v_add_u32 v{vTmp(3)}, s101, v{vTmp(2)}
        v_cmp_gt_u32 vcc, {BN}, v{vTmp(3)}
        s_and_b64 exec, s[12:13], vcc
        s_cbranch_execz {lab}
        s_mul_i32 s101, s100, {8 * MROW}
        s_add_u32 s101, s101, {L_MACC}
        v_add_u32 v{vTmp(3)}, s101, v{vTmp(0)}
        ds_read_b128 v[208:211], v{vTmp(3)}
        s_waitcnt lgkmcnt(0)
        v_add_f32 v208, v208, v{168+4*w}
        v_add_f32 v209, v209, v{169+4*w}
        v_add_f32 v210, v210, v{170+4*w}
        v_add_f32 v211, v211, v{171+4*w}
        ds_write_b128 v{vTmp(3)}, v[208:211]
        s_waitcnt lgkmcnt(0)
        """)
        g.label(lab)
        g("s_mov_b64 exec, s[12:13]")
    g.label("K2_red_done")
    g(f"""
    s_mov_b64 exec, s[62:63]
    s_waitcnt lgkmcnt(0)
    s_barrier
    s_mov_b32 s{sF0}, s7
    s_cmp_lt_u32 s7, s{sTot}
    s_cbranch_scc1 K2_ROUND
    v_mul_u32_u24 v8, {MROW}, v5
    v_lshl_add_u32 v8, v3, 5, v8
    v_add_u32 v8, {L_MACC}, v8
    s_mov_b32 s61, 0x{NLN2:08x}
    """)
    stamp(g, 6, st)
    if dbg == "macc":
        dump_lds(g, L_MACC, BN * MROW, 32 << 20)
        g("s_branch K2_END")
    for s_ in range(8):
        if s_ == 7: g("s_waitcnt lgkmcnt(8)")
        g(f"""
        ds_read_b128 v[{184 + 8*s_}:{187 + 8*s_}], v8 offset:{64 * s_}
        ds_read_b128 v[{188 + 8*s_}:{191 + 8*s_}], v8 offset:{64 * s_ + 16}
        """)
    for s_ in range(8):
        g(f"s_waitcnt lgkmcnt({2 * (7 - s_)})")
        for k in range(8):
            g(f"v_mul_f32 v{184 + 8*s_ + k}, s61, v{184 + 8*s_ + k}")
        for d in range(4):
            g(f"v_cvt_pk_bf16_f32 v{vMf(s_)+d}, v{184 + 8*s_ + 2*d}, v{184 + 8*s_ + 2*d + 1}")
    g("s_waitcnt vmcnt(0)")
    for s in range(8):
        mfma(g, vAcc, vWh(s), vHf(s), vAcc if s else None)
    for s in range(8):
        mfma(g, vAcc, vWh(8 + s), vMf(s), vAcc)
    g(f"s_mov_b32 s62, 0x{C1:08x}")
    for u in range(4):
        a = vAcc + 4 * u
        g(f"""
        v_cvt_pk_bf16_f32 v216, v{a}, v{a+1}
        v_cvt_pk_bf16_f32 v217, v{a+2}, v{a+3}
        v_lshlrev_b32 v{a}, 16, v216
        v_and_b32 v{a+1}, 0xffff0000, v216
        v_lshlrev_b32 v{a+2}, 16, v217
        v_and_b32 v{a+3}, 0xffff0000, v217
        """)
        for k in range(4):
            g(f"v_mul_f32 v{218+k}, s62, v{a+k}")
        for k in range(4):
            g(f"v_exp_f32 v{218+k}, v{218+k}")
        for k in range(4):
            g(f"v_add_f32 v{218+k}, 1.0, v{218+k}")
        for k in range(4):
            g(f"v_rcp_f32 v{218+k}, v{218+k}")
        for k in range(4):
            g(f"v_mul_f32 v{218+k}, v{a+k}, v{218+k}")
        g(f"""
        v_cvt_pk_bf16_f32 v216, v218, v219
        v_cvt_pk_bf16_f32 v217, v220, v221
        v_lshlrev_b32 v218, 16, v216
        v_and_b32 v219, 0xffff0000, v216
        v_lshlrev_b32 v220, 16, v217
        v_and_b32 v221, 0xffff0000, v217
        v_lshlrev_b32 v222, 16, v{vHr(u)}
        v_and_b32 v223, 0xffff0000, v{vHr(u)}
        v_lshlrev_b32 v224, 16, v{vHr(u)+1}
        v_and_b32 v225, 0xffff0000, v{vHr(u)+1}
        v_add_f32 v218, v218, v222
        v_add_f32 v219, v219, v223
        v_add_f32 v220, v220, v224
        v_add_f32 v221, v221, v225
        v_cvt_pk_bf16_f32 v{226+2*u}, v218, v219
        v_cvt_pk_bf16_f32 v{227+2*u}, v220, v221
        """)
    g(f"""
    v_cmp_gt_u32 vcc, {BN}, v5
    s_and_saveexec_b64 s[62:63], vcc
    s_cbranch_execz K2_nost
    """)
    for u in range(4):
        g(f"buffer_store_dwordx2 v[{226+2*u}:{227+2*u}], v7, s[{S_OUT}:{S_OUT+3}], s60 offen offset:{16 * u}")
    g.label("K2_nost")
    g("s_mov_b64 exec, s[62:63]")
    g(f"""
    s_cmp_lg_u32 s{sW}, 7
    s_cbranch_scc1 K2_END
    v_cmp_gt_u32 vcc, {BN}, v1
    s_and_saveexec_b64 s[62:63], vcc
    v_mul_u32_u24 v4, {MROW}, v1
    v_add_u32 v4, {L_MACC + 512}, v4
    ds_read_b128 v[{vTmp(0)}:{vTmp(3)}], v4
    v_add_u32 v5, s{sNB}, v1
    v_mul_u32_u24 v5, 6, v5
    buffer_load_ushort v{vTmp(4)}, v5, s[{S_POS}:{S_POS+3}], 0 offen
    buffer_load_ushort v{vTmp(5)}, v5, s[{S_POS}:{S_POS+3}], 0 offen offset:2
    buffer_load_ushort v{vTmp(6)}, v5, s[{S_POS}:{S_POS+3}], 0 offen offset:4
    s_mov_b32 s60, 3200000
    s_waitcnt vmcnt(0) lgkmcnt(0)
    """)
    for x in range(3):
        g(f"""
        v_lshlrev_b32 v{vTmp(4+x)}, 16, v{vTmp(4+x)}
        v_fmac_f32 v{vTmp(4+x)}, s61, v{vTmp(x)}
        v_cvt_pk_bf16_f32 v{vTmp(4+x)}, v{vTmp(4+x)}, v{vTmp(4+x)}
        buffer_store_short v{vTmp(4+x)}, v5, s[{S_OUT}:{S_OUT+3}], s60 offen offset:{2 * x}
        """)
    g("s_mov_b64 exec, s[62:63]")
    g("s_branch K2_END")
    g.label("K2_END")
    if st:
        stamp(g, 7, st)
        g(f"""
        s_mov_b64 exec, -1
        s_cmp_ge_u32 s2, {NB}
        s_cbranch_scc1 K2_END2
        v_lshlrev_b32 v4, 2, v1
        s_lshl_b32 s59, s2, 3
        s_add_u32 s59, s59, s{sW}
        s_lshl_b32 s59, s59, 8
        s_add_u32 s59, s59, {48 << 20}
        buffer_store_dword v255, v4, s[{S_WS}:{S_WS+3}], s59 offen
        s_add_u32 s59, s59, {1 << 20}
        buffer_store_dword v254, v4, s[{S_WS}:{S_WS+3}], s59 offen
        """)
        g.label("K2_END2")
    if RT:
        g(f"""
        s_mov_b64 exec, -1
        s_waitcnt vmcnt(0) lgkmcnt(0)
        s_memrealtime s[94:95]
        s_load_dwordx2 s[12:13], s[0:1], 80
        v_mov_b32 v4, v0
        s_waitcnt lgkmcnt(0)
        """)
        srd(g, S_WS, 12, WS_BYTES)
        g(f"""
        v_mov_b32 v2, v255
        v_mov_b32 v3, s94
        s_lshl_b32 s61, s2, 4
        s_add_u32 s61, s61, {57 << 20}
        v_cmp_eq_u32 vcc, 0, v4
        s_and_saveexec_b64 s[62:63], vcc
        s_cbranch_execz K2_END3
        v_mov_b32 v4, 0
        buffer_store_dwordx2 v[2:3], v4, s[{S_WS}:{S_WS+3}], s61 offen
        """)
        g.label("K2_END3")
    g.label("K2_EXIT")
    g("s_endpgm")


def dump_lds(g, lds_off, nbytes, ws_off):
    lab = g.newlabel("dump")
    g(f"""
    s_barrier
    s_lshl_b32 s59, s2, 18
    s_add_u32 s59, s59, {ws_off}
    v_lshlrev_b32 v4, 2, v0
    v_add_u32 v5, {lds_off}, v4
    s_mov_b32 s60, 0
    """)
    g.label(lab)
    g(f"""
    v_add_u32 v6, s60, v5
    v_add_u32 v7, s60, v4
    ds_read_b32 v8, v6
    s_waitcnt lgkmcnt(0)
    buffer_store_dword v8, v7, s[{S_WS}:{S_WS+3}], s59 offen
    s_add_u32 s60, s60, 2048
    s_cmp_lt_u32 s60, {nbytes}
    s_cbranch_scc1 {lab}
    """)


if __name__ == "__main__":
    dbg = sys.argv[2] if len(sys.argv) > 2 else None
    out = sys.argv[1] if len(sys.argv) > 1 else "k.s"
    open(out, "w").write(build(lambda g: k2(g, dbg), k2_lds=163840))
    print("wrote", out)
```
